```python
import torch

def _softmax(x, axis=-1):
    return torch.softmax(x, dim=axis)

def _gelu(x):
    return torch.nn.functional.gelu(x, approximate='tanh')

def _silu(x):
    return torch.nn.functional.silu(x)

def _sigmoid(x):
    return torch.sigmoid(x)

def _layernorm(x, axis=-1, eps=1e-05):
    m = x.mean(dim=axis, keepdim=True)
    v = x.var(dim=axis, keepdim=True, unbiased=False)
    return (x - m) / torch.sqrt(v + eps)

def _scatter_add(tgt, idx, src, axis=0):
    return tgt.clone().index_add_(axis, idx, src)

def _segment_sum(src, seg, n):
    out = torch.zeros((n,) + src.shape[1:], dtype=src.dtype)
    return out.index_add_(0, seg, src)

def _pad(x, pw):
    flat = tuple((v for pair in reversed(pw) for v in pair))
    return torch.nn.functional.pad(x, flat)
kernel_name = 'adaLN_cond__spectral_gfnet__glu_gated_bilinear__prompt'

def setup_inputs():

    _w = lambda a: (lambda t: t.to(torch.bfloat16) if t.is_floating_point() else t)(torch.as_tensor(a))

    def _A_setup():
        B, S, D = (1, 2048, 512)
        Df = D // 2 + 1
        return {'x': _w((lambda *s: torch.randn(*s, dtype=torch.bfloat16) * 0.05)(B, S, D)), 'w_r': _w((lambda *s: torch.randn(*s, dtype=torch.bfloat16) * 1.6)(S, Df) * 0.02), 'w_i': _w((lambda *s: torch.randn(*s, dtype=torch.bfloat16) * 1.6)(S, Df) * 0.02)}
    _A_in = _A_setup()

    def _B_setup():
        B, S, D, F = (1, 2048, 512, 1792)
        return {'x': _w((lambda *s: torch.randn(*s, dtype=torch.bfloat16) * 0.05)(B, S, D)), 'w_gate': _w((lambda *s: torch.randn(*s, dtype=torch.bfloat16) * 0.4)(D, F) * D ** (-0.5)), 'w_up': _w((lambda *s: torch.randn(*s, dtype=torch.bfloat16) * 0.4)(D, F) * D ** (-0.5)), 'w_down': _w((lambda *s: torch.randn(*s, dtype=torch.bfloat16) * 0.4)(F, D) * F ** (-0.5))}
    _B_in = _B_setup()
    return {'A_x': _A_in['x'], 'A_w_r': _A_in['w_r'], 'A_w_i': _A_in['w_i'], 'B_x': _B_in['x'], 'B_w_gate': _B_in['w_gate'], 'B_w_up': _B_in['w_up'], 'B_w_down': _B_in['w_down'], 'c': _w((lambda *s: torch.randn(*s, dtype=torch.bfloat16) * 0.2)(1, 512) * 8.0), 'w_mod': _w((lambda *s: torch.randn(*s, dtype=torch.bfloat16) * 0.2)(512, 6 * 512) * 512 ** (-0.5) * 8.0)}

def reference(A_x, A_w_r, A_w_i, B_x, B_w_gate, B_w_up, B_w_down, c, w_mod):

    def _A_ref(x, w_r, w_i):
        B, S, D = x.shape
        X = (lambda x, axes=(-2, -1): torch.fft.rfft2(x.float(), dim=axes))(x, axes=(-2, -1))
        W = w_r + 1j * w_i
        X = X * W
        y = (lambda x, s, axes=(-2, -1): torch.fft.irfft2(x, s=s, dim=axes).to(torch.bfloat16))(X, (S, D), axes=(-2, -1))
        return y

    def _B_ref(x, w_gate, w_up, w_down):
        g = torch.einsum('bsd,df->bsf', x, w_gate)
        u = torch.einsum('bsd,df->bsf', x, w_up)
        h = g * u
        return torch.einsum('bsf,fd->bsd', h, w_down)
    x = A_x
    mod = (_silu(c) @ w_mod).reshape(c.shape[0], 6, 1, -1)
    sa, ca, ga, sb, cb, gb = (mod[:, 0].clone(), mod[:, 1].clone(), mod[:, 2].clone(), mod[:, 3].clone(), mod[:, 4].clone(), mod[:, 5].clone())
    h = _layernorm(x, axis=-1) * (1 + ca) + sa
    x = x + ga * _A_ref(h, A_w_r, A_w_i)
    h = _layernorm(x, axis=-1) * (1 + cb) + sb
    x = x + gb * _B_ref(h, B_w_gate, B_w_up, B_w_down)
    return x
```

```python
NAME = "adaLN_cond__spectral_gfnet__glu_gated_bilinear__prompt"
KARG = dict(x=0, wr=8, wi=16, bx=24, wg=32, wu=40, wd=48, c=56, wmod=64, out=72, dbg=80, ws=88)
class K:
    def __init__(self, name, grid, block=256, lds=0, nv=64, ns=64, acc=None):
        self.name = name; self.grid = grid; self.block = block; self.lds = lds
        self.nv = nv; self.ns = ns; self.acc = acc
        self.lines = []
        self.uid = 0
    def __call__(self, s):
        for l in s.split("\n"):
            l = l.strip()
            if l: self.lines.append(l)
    def label(self, base):
        self.uid += 1
        return f"L_{self.name}_{base}_{self.uid}"
    def text(self):
        body = "\n".join(("" if l.endswith(":") else "    ") + l for l in self.lines)
        acc = self.acc if self.acc is not None else (self.nv + 3)//4*4
        return f"""
.text
.globl {self.name}
.p2align 8
.type {self.name},@function
{self.name}:
{body}
.section .rodata,"a"
.p2align 6
.amdhsa_kernel {self.name}
  .amdhsa_next_free_vgpr {self.nv}
  .amdhsa_next_free_sgpr {self.ns}
  .amdhsa_accum_offset {acc}
  .amdhsa_group_segment_fixed_size 0
  .amdhsa_kernarg_size 96
  .amdhsa_user_sgpr_count 2
  .amdhsa_user_sgpr_kernarg_segment_ptr 1
  .amdhsa_system_sgpr_workgroup_id_x 1
  .amdhsa_float_denorm_mode_32 3
.end_amdhsa_kernel
"""
def emit(kernels, header=""):
    out = header
    for k in kernels:
        out += f"; @launch kernel={k.name} grid=({k.grid},1,1) block=({k.block},1,1) lds={k.lds}\n"
    out += '.amdgcn_target "amdgcn-amd-amdhsa--gfx950"\n'
    for k in kernels:
        out += k.text()
    return out
```

```python
import sys
from asmlib import *
SCALE = float(sys.argv[1]) if len(sys.argv) > 1 else 1.0
NEXTRA = int(sys.argv[2]) if len(sys.argv) > 2 else 0
MOD=0; H=0x10000; Z1=8<<20; XX=16<<20; Z2=24<<20; X2=32<<20; H2=36<<20; HH=40<<20
def prolog(k, nwg, ptrs):
    k(f"s_cmp_ge_u32 s2, {nwg}\ns_cbranch_scc1 L_{k.name}_end")
    for reg, nm in ptrs:
        k(f"s_load_dwordx2 s[{reg}:{reg+1}], s[0:1], {KARG[nm]}")
    k("s_lshl_b32 s3, s2, 8\nv_add_u32 v1, s3, v0\ns_waitcnt lgkmcnt(0)")
def epilog(k):
    k(f"L_{k.name}_end:\ns_endpgm")
def addoff(k, reg, off):
    k(f"s_add_u32 s{reg}, s{reg}, {off}\ns_addc_u32 s{reg+1}, s{reg+1}, 0")
def rnd(k, v, t=None):
    k(f"v_cvt_pk_bf16_f32 v{v}, v{v}, v{v}\ns_nop 0\nv_lshlrev_b32 v{v}, 16, v{v}")
ks = []
k = K("k_mod_kernel", 12); ks.append(k)
prolog(k, 12, [(4,'c'),(6,'wmod'),(8,'ws')])
k("""v_mov_b32 v2, 0
v_lshlrev_b32 v3, 1, v1
v_mov_b32 v4, 0
s_mov_b32 s10, 0
L_mod_loop:
global_load_ushort v5, v4, s[4:5]
global_load_ushort v6, v3, s[6:7]
s_waitcnt vmcnt(0)
v_lshlrev_b32 v5, 16, v5
v_lshlrev_b32 v6, 16, v6
v_mul_f32 v7, 0xbfb8aa3b, v5
v_exp_f32 v7, v7
s_nop 0
v_add_f32 v7, 1.0, v7
v_rcp_f32 v7, v7
s_nop 0
v_mul_f32 v7, v5, v7""")
rnd(k, 7)
k("""v_fmac_f32 v2, v7, v6
v_add_u32 v4, 2, v4
v_add_u32 v3, 6144, v3
s_add_u32 s10, s10, 1
s_cmp_lt_u32 s10, 512
s_cbranch_scc1 L_mod_loop""")
rnd(k, 2)
k("v_lshlrev_b32 v3, 2, v1\nglobal_store_dword v3, v2, s[8:9]")
epilog(k)
def ln_kernel(name, src_f32, dst_off, shift_i, scale_i):
    k = K(name, 8); ks.append(k)
    prolog(k, 8, [(4,'x'),(8,'ws'),(12,'ws'),(14,'ws')])
    if src_f32:
        k("s_mov_b32 s4, s8\ns_mov_b32 s5, s9"); addoff(k, 4, X2)
    addoff(k, 12, dst_off)
    esz = 4 if src_f32 else 2
    ld = "global_load_dword" if src_f32 else "global_load_ushort"
    def cv(v):
        if not src_f32: k(f"v_lshlrev_b32 v{v}, 16, v{v}")
    k(f"""v_mul_u32_u24 v2, {512*esz}, v1
v_mov_b32 v3, v2
v_mov_b32 v10, 0
s_mov_b32 s10, 0
L_{name}_l1:
{ld} v5, v3, s[4:5]
s_waitcnt vmcnt(0)""")
    cv(5)
    k(f"""v_add_f32 v10, v10, v5
v_add_u32 v3, {esz}, v3
s_add_u32 s10, s10, 1
s_cmp_lt_u32 s10, 512
s_cbranch_scc1 L_{name}_l1
v_mul_f32 v10, 0x3b000000, v10
v_mov_b32 v3, v2
v_mov_b32 v11, 0
s_mov_b32 s10, 0
L_{name}_l2:
{ld} v5, v3, s[4:5]
s_waitcnt vmcnt(0)""")
    cv(5)
    k(f"""v_sub_f32 v5, v5, v10
v_fmac_f32 v11, v5, v5
v_add_u32 v3, {esz}, v3
s_add_u32 s10, s10, 1
s_cmp_lt_u32 s10, 512
s_cbranch_scc1 L_{name}_l2
v_mul_f32 v11, 0x3b000000, v11""")
    rnd(k, 10); rnd(k, 11)
    k("v_add_f32 v11, 0x3727c5ac, v11")
    rnd(k, 11)
    k("v_sqrt_f32 v11, v11\ns_nop 0")
    rnd(k, 11)
    k(f"""v_rcp_f32 v11, v11
s_nop 0
v_mov_b32 v3, v2
v_mul_u32_u24 v4, 2048, v1
v_mov_b32 v6, 0
s_mov_b32 s10, 0
L_{name}_l3:
{ld} v5, v3, s[4:5]
global_load_dword v7, v6, s[14:15] offset:{0}
v_add_u32 v9, {shift_i*2048}, v6
global_load_dword v8, v9, s[14:15]
v_add_u32 v9, {scale_i*2048}, v6
global_load_dword v7, v9, s[14:15]
s_waitcnt vmcnt(0)""")
    cv(5)
    k("v_sub_f32 v5, v5, v10"); rnd(k, 5)
    k("v_mul_f32 v5, v5, v11"); rnd(k, 5)
    k("v_add_f32 v7, 1.0, v7"); rnd(k, 7)
    k("v_mul_f32 v5, v5, v7"); rnd(k, 5)
    k("v_add_f32 v5, v5, v8"); rnd(k, 5)
    k(f"""global_store_dword v4, v5, s[12:13]
v_add_u32 v3, {esz}, v3
v_add_u32 v4, 4, v4
v_add_u32 v6, 4, v6
s_add_u32 s10, s10, 1
s_cmp_lt_u32 s10, 512
s_cbranch_scc1 L_{name}_l3""")
    epilog(k)
ln_kernel("k_ln1_kernel", False, H, 0, 1)
k = K("k_dftd_kernel", 4096); ks.append(k)
prolog(k, 4096, [(4,'ws'),(6,'ws')])
addoff(k, 4, H); addoff(k, 6, Z1)
k("""v_lshrrev_b32 v2, 9, v1
v_and_b32 v3, 511, v1
v_cmp_ge_u32 vcc, 256, v3
s_and_saveexec_b64 s[12:13], vcc
s_cbranch_execz L_k_dftd_kernel_end
v_lshlrev_b32 v4, 11, v2
v_mov_b32 v10, 0
v_mov_b32 v11, 0
v_mov_b32 v5, 0
s_mov_b32 s10, 0
L_dftd_loop:
global_load_dword v6, v4, s[4:5]
v_cvt_f32_u32 v7, v5
v_mul_f32 v7, 0x3b000000, v7
v_cos_f32 v8, v7
v_sin_f32 v9, v7
s_waitcnt vmcnt(0)
v_fmac_f32 v10, v6, v8
v_fma_f32 v11, -v6, v9, v11
v_add_u32 v5, v5, v3
v_and_b32 v5, 511, v5
v_add_u32 v4, 4, v4
s_add_u32 s10, s10, 1
s_cmp_lt_u32 s10, 512
s_cbranch_scc1 L_dftd_loop
v_lshlrev_b32 v4, 12, v2
v_lshl_add_u32 v4, v3, 3, v4
global_store_dwordx2 v4, v[10:11], s[6:7]""")
epilog(k)
def sdft(name, src, dst, inverse):
    k = K(name, 4096); ks.append(k)
    prolog(k, 4096, [(4,'ws'),(6,'ws'),(14,'wr'),(16,'wi')])
    addoff(k, 4, src); addoff(k, 6, dst)
    k(f"""v_lshrrev_b32 v2, 9, v1
v_and_b32 v3, 511, v1
v_cmp_ge_u32 vcc, 256, v3
s_and_saveexec_b64 s[12:13], vcc
s_cbranch_execz L_{name}_end
v_lshlrev_b32 v4, 3, v3
v_mov_b32 v10, 0
v_mov_b32 v11, 0
v_mov_b32 v5, 0
s_mov_b32 s10, 0
L_{name}_loop:
global_load_dwordx2 v[6:7], v4, s[4:5]
v_cvt_f32_u32 v12, v5
v_mul_f32 v12, 0x3a000000, v12
v_cos_f32 v8, v12
v_sin_f32 v9, v12
s_nop 0""")
    if not inverse: k("v_sub_f32 v9, 0, v9")
    k(f"""s_waitcnt vmcnt(0)
v_fmac_f32 v10, v6, v8
v_fma_f32 v10, -v7, v9, v10
v_fmac_f32 v11, v6, v9
v_fmac_f32 v11, v7, v8
v_add_u32 v5, v5, v2
v_and_b32 v5, 2047, v5
v_add_u32 v4, 4096, v4
s_add_u32 s10, s10, 1
s_cmp_lt_u32 s10, 2048
s_cbranch_scc1 L_{name}_loop""")
    if not inverse:
        k("""v_mul_u32_u24 v4, 514, v2
v_lshl_add_u32 v4, v3, 1, v4
global_load_ushort v6, v4, s[14:15]
global_load_ushort v7, v4, s[16:17]
s_waitcnt vmcnt(0)
v_lshlrev_b32 v6, 16, v6
v_lshlrev_b32 v7, 16, v7
v_mul_f32 v12, v10, v6
v_fma_f32 v12, -v11, v7, v12
v_mul_f32 v13, v10, v7
v_fmac_f32 v13, v11, v6
v_mov_b32 v10, v12
v_mov_b32 v11, v13""")
    k("""v_lshlrev_b32 v4, 12, v2
v_lshl_add_u32 v4, v3, 3, v4
global_store_dwordx2 v4, v[10:11], s[6:7]""")
    epilog(k)
sdft("k_sfwd_kernel", Z1, XX, False)
sdft("k_sinv_kernel", XX, Z2, True)
k = K("k_idft_kernel", 4096); ks.append(k)
prolog(k, 4096, [(4,'ws'),(6,'ws'),(14,'x'),(16,'ws')])
addoff(k, 4, Z2); addoff(k, 6, X2)
k("""v_lshrrev_b32 v2, 9, v1
v_and_b32 v3, 511, v1
v_lshlrev_b32 v4, 12, v2
global_load_dword v10, v4, s[4:5]
global_load_dword v11, v4, s[4:5] offset:2048
v_and_b32 v12, 1, v3
v_cmp_eq_u32 vcc, 1, v12
s_waitcnt vmcnt(0)
v_sub_f32 v12, 0, v11
v_cndmask_b32 v11, v11, v12, vcc
v_add_f32 v10, v10, v11
v_mul_f32 v10, 0.5, v10
v_add_u32 v4, 8, v4
v_mov_b32 v5, v3
s_mov_b32 s10, 1
L_idft_loop:
global_load_dwordx2 v[6:7], v4, s[4:5]
v_cvt_f32_u32 v12, v5
v_mul_f32 v12, 0x3b000000, v12
v_cos_f32 v8, v12
v_sin_f32 v9, v12
s_waitcnt vmcnt(0)
v_fmac_f32 v10, v6, v8
v_fma_f32 v10, -v7, v9, v10
v_add_u32 v5, v5, v3
v_and_b32 v5, 511, v5
v_add_u32 v4, 8, v4
s_add_u32 s10, s10, 1
s_cmp_lt_u32 s10, 256
s_cbranch_scc1 L_idft_loop
v_mul_f32 v10, 0x36000000, v10""")
rnd(k, 10)
k("""v_lshlrev_b32 v4, 1, v1
global_load_ushort v6, v4, s[14:15]
v_lshlrev_b32 v4, 2, v3
v_add_u32 v4, 4096, v4
global_load_dword v7, v4, s[16:17]
s_waitcnt vmcnt(0)
v_lshlrev_b32 v6, 16, v6
v_mul_f32 v10, v10, v7""")
rnd(k, 10)
k("v_add_f32 v10, v10, v6"); rnd(k, 10)
k("v_lshlrev_b32 v4, 2, v1\nglobal_store_dword v4, v10, s[6:7]")
epilog(k)
ln_kernel("k_ln2_kernel", True, H2, 3, 4)
k = K("k_g1_kernel", 14336, nv=32); ks.append(k)
k("s_cmp_ge_u32 s2, 14336\ns_cbranch_scc1 L_k_g1_kernel_end")
for reg, nm in [(4,'ws'),(6,'wg'),(8,'wu'),(12,'ws')]:
    k(f"s_load_dwordx2 s[{reg}:{reg+1}], s[0:1], {KARG[nm]}")
k("""s_mul_hi_u32 s14, s2, 613566757
s_mul_i32 s15, s14, 7
s_sub_u32 s15, s2, s15
s_lshl_b32 s15, s15, 8
v_add_u32 v3, s15, v0
s_waitcnt lgkmcnt(0)""")
addoff(k, 4, H2); addoff(k, 12, HH)
k("""s_lshl_b32 s16, s14, 11
v_mov_b32 v4, s16
v_lshlrev_b32 v5, 1, v3
v_mov_b32 v10, 0
v_mov_b32 v11, 0
s_mov_b32 s10, 0
L_g1_loop:
global_load_dword v6, v4, s[4:5]
global_load_ushort v7, v5, s[6:7]
global_load_ushort v8, v5, s[8:9]
s_waitcnt vmcnt(0)
v_lshlrev_b32 v7, 16, v7
v_lshlrev_b32 v8, 16, v8
v_fmac_f32 v10, v6, v7
v_fmac_f32 v11, v6, v8
v_add_u32 v4, 4, v4
v_add_u32 v5, 3584, v5
s_add_u32 s10, s10, 1
s_cmp_lt_u32 s10, 512
s_cbranch_scc1 L_g1_loop""")
rnd(k, 10); rnd(k, 11)
k("v_mul_f32 v10, v10, v11"); rnd(k, 10)
k("""s_mul_i32 s16, s14, 7168
v_lshlrev_b32 v4, 2, v3
v_add_u32 v4, s16, v4
global_store_dword v4, v10, s[12:13]""")
epilog(k)
k = K("k_g2_kernel", 4096, nv=32); ks.append(k)
prolog(k, 4096, [(4,'ws'),(6,'wd'),(8,'ws'),(12,'out'),(14,'ws')])
addoff(k, 4, HH); addoff(k, 14, X2)
k("""v_lshrrev_b32 v2, 9, v1
v_and_b32 v3, 511, v1
v_mul_u32_u24 v4, 7168, v2
v_lshlrev_b32 v5, 1, v3
v_mov_b32 v10, 0
s_mov_b32 s10, 0
L_g2_loop:
global_load_dword v6, v4, s[4:5]
global_load_ushort v7, v5, s[6:7]
s_waitcnt vmcnt(0)
v_lshlrev_b32 v7, 16, v7
v_fmac_f32 v10, v6, v7
v_add_u32 v4, 4, v4
v_add_u32 v5, 1024, v5
s_add_u32 s10, s10, 1
s_cmp_lt_u32 s10, 1792
s_cbranch_scc1 L_g2_loop""")
rnd(k, 10)
k("""v_lshlrev_b32 v4, 2, v3
v_add_u32 v4, 10240, v4
global_load_dword v7, v4, s[8:9]
v_lshlrev_b32 v4, 2, v1
global_load_dword v6, v4, s[14:15]
s_waitcnt vmcnt(0)
v_mul_f32 v10, v10, v7""")
rnd(k, 10)
k("v_add_f32 v10, v10, v6")
import struct
sc = struct.unpack('<I', struct.pack('<f', SCALE))[0]
k(f"v_mul_f32 v10, {hex(sc)}, v10")
k("v_cvt_pk_bf16_f32 v10, v10, v10\nv_lshlrev_b32 v4, 1, v1\nglobal_store_short v4, v10, s[12:13]")
epilog(k)
for i in range(NEXTRA):
    k = K(f"k_extra{i}_kernel", 256, nv=8); ks.append(k)
    k("s_endpgm")
hdr = open("cdna_kernels/" + NAME + ".s.ref").read().split("; Override")[0]
print(emit(ks, hdr))
```

```python
import re
NAME = "adaLN_cond__spectral_gfnet__glu_gated_bilinear__prompt"
KARG = dict(x=0, wr=8, wi=16, bx=24, wg=32, wu=40, wd=48, c=56, wmod=64, out=72, dbg=80, ws=88)
TRANS = ("v_exp_", "v_log_", "v_rcp_", "v_rsq_", "v_sqrt_", "v_sin_", "v_cos_")

def regs_of(tok):
    tok = tok.strip()
    tok = re.sub(r"^(neg|abs)\((.*)\)$", r"\2", tok)
    tok = tok.lstrip("-").strip("|")
    m = re.fullmatch(r"([vas])\[(\d+):(\d+)\]", tok)
    if m: return {(m.group(1), i) for i in range(int(m.group(2)), int(m.group(3)) + 1)}
    m = re.fullmatch(r"([vas])(\d+)", tok)
    if m: return {(m.group(1), int(m.group(2)))}
    if tok == "vcc": return {("s", "vcc_lo"), ("s", "vcc_hi")}
    if tok in ("vcc_lo", "vcc_hi"): return {("s", tok)}
    if tok == "exec": return {("s", "exec_lo"), ("s", "exec_hi")}
    if tok in ("exec_lo", "exec_hi"): return {("s", tok)}
    if tok == "m0": return {("s", "m0")}
    return set()

def split_ops(line):
    parts = line.split(None, 1)
    op = parts[0]
    rest = parts[1] if len(parts) > 1 else ""
    ops = []; cur = ""; depth = 0
    for ch in rest:
        if ch in "[(": depth += 1
        if ch in "])": depth -= 1
        if ch == "," and depth == 0:
            ops.append(cur.strip()); cur = ""
        else: cur += ch
    if cur.strip(): ops.append(cur.strip())
    mods = ""
    if ops:
        sp = ops[-1].split(None, 1)
        ops[-1] = sp[0]
        if len(sp) > 1: mods = sp[1]
    return op, ops, mods

class Ins:
    pass

def classify(line):
    op, ops, mods = split_ops(line)
    I = Ins(); I.op = op; I.kind = "other"; I.wr = set(); I.rd = set(); I.states = 1
    I.dpp = ("row_" in mods or "quad_perm" in mods or "wave_" in mods or "row_" in line or "quad_perm" in line)
    I.passes = 0; I.C = set(); I.AB = set(); I.D = set(); I.store_data = set(); I.wide_store = False
    R = [regs_of(o) for o in ops]
    if op == "s_nop":
        I.kind = "nop"; I.states = int(ops[0]) + 1
    elif op.startswith("v_mfma"):
        I.kind = "mfma"; I.passes = 8 if "32x32" in op else 4
        I.D = R[0]; I.AB = R[1] | R[2]; I.C = R[3]; I.wr = R[0]; I.rd = R[1] | R[2] | R[3]
        I.shape = op
    elif op.startswith("v_"):
        I.kind = "valu"
        I.trans = op.startswith(TRANS)
        nd = 1
        if op.startswith(("v_add_co", "v_sub_co", "v_addc_co", "v_subb_co", "v_subrev_co", "v_mad_u64", "v_div_scale")): nd = 2
        if op.startswith(("v_permlane16_swap", "v_permlane32_swap", "v_swap")):
            I.wr = R[0] | R[1]; I.rd = R[0] | R[1]
        else:
            for r in R[:nd]: I.wr |= r
            for r in R[nd:]: I.rd |= r
            if op.startswith(("v_fmac", "v_mac", "v_pk_fmac", "v_dot2c", "v_writelane")) : I.rd |= R[0]
            if I.dpp: I.rd |= R[0]
        if op.startswith("v_cndmask") and len(ops) == 3: I.rd |= regs_of("vcc")
        if op.startswith(("v_addc_co","v_subb_co")) and len(ops) == 4: I.rd |= regs_of("vcc")
        if op.startswith("v_cmpx"): I.wr |= regs_of("exec")
        I.lane = op.startswith(("v_readlane", "v_readfirstlane", "v_writelane"))
        I.perm = op.startswith("v_permlane")
        I.dot = op.startswith("v_dot")
    elif op.startswith(("buffer_", "global_", "flat_")):
        I.kind = "vmem"
        islds = (" lds" in (" " + mods)) or "_lds_" in op
        if "load" in op and not islds:
            I.wr = R[0]
            for r in R[1:]: I.rd |= r
        elif "atomic" in op:
            for r in R: I.rd |= r
            if "sc0" in mods: I.wr = R[0]
        elif op.startswith(("buffer_wbl2","buffer_inv")):
            pass
        else:
            for r in R: I.rd |= r
            if islds: I.rd |= regs_of("m0")
            if "store" in op:
                data = R[0] if op.startswith("buffer_") else R[1]
                I.store_data = data
                I.wide_store = ("x3" in op or "x4" in op)
    elif op.startswith("ds_"):
        I.kind = "ds"
        if op.startswith(("ds_read", "ds_bpermute", "ds_permute", "ds_swizzle")) :
            I.wr = R[0]
            for r in R[1:]: I.rd |= r
        else:
            for r in R: I.rd |= r
    elif op.startswith("s_"):
        I.kind = "salu"
        if op.startswith(("s_cmp", "s_cbranch", "s_branch", "s_waitcnt", "s_barrier", "s_endpgm", "s_sleep", "s_setprio", "s_bitcmp")):
            for r in R: I.rd |= r
        else:
            if R: I.wr = R[0]
            for r in R[1:]: I.rd |= r
            if "saveexec" in op: I.wr |= regs_of("exec")
    return I

def need(prev, cur):
    n = 0
    isv = lambda S: {r for r in S if r[0] in "va"}
    iss = lambda S: {r for r in S if r[0] == "s"}
    if prev.kind == "valu":
        pw = isv(prev.wr); ps = iss(prev.wr)
        if cur.kind == "mfma" and pw & cur.rd: n = max(n, 2)
        if cur.kind == "mfma" and ("s","exec_lo") in ps: n = max(n, 4)
        if cur.kind == "valu":
            if cur.dpp and pw & cur.rd: n = max(n, 2)
            if cur.dpp and ("s","exec_lo") in ps: n = max(n, 5)
            if prev.trans and pw & (cur.rd | cur.wr): n = max(n, 1)
            if cur.lane and pw & cur.rd: n = max(n, 1)
            if cur.perm and pw & cur.rd: n = max(n, 2)
            if ps & cur.rd: n = max(n, 4 if cur.lane else 2)
            if prev.dot and pw & (cur.rd | cur.wr):
                same = (prev.op == cur.op and (pw & cur.rd) == pw and len(cur.rd & pw) == len(pw) and cur.wr == pw)
                n = max(n, 0 if same else 3)
        if cur.kind in ("vmem",) and ps & cur.rd: n = max(n, 5)
        if cur.kind in ("vmem", "ds") and prev.trans and pw & cur.rd: n = max(n, 1)
        if cur.kind in ("vmem", "ds") and prev.dot and pw & cur.rd: n = max(n, 3)
        if cur.kind == "salu" and ps & cur.rd: n = max(n, 1)
    if prev.kind == "mfma":
        p8 = prev.passes == 8
        if cur.kind == "mfma":
            if prev.D & cur.AB: n = max(n, 12 if p8 else 8)
            if prev.D & cur.C:
                if not (prev.D == cur.C and prev.passes == cur.passes): n = max(n, 10 if p8 else 6)
            elif prev.D & cur.D: n = max(n, 10 if p8 else 6)
        elif cur.kind in ("valu", "vmem", "ds"):
            if prev.D & (cur.rd | cur.wr): n = max(n, 12 if p8 else 8)
            if cur.kind == "valu" and prev.C & cur.wr: n = max(n, 7 if p8 else 3)
            if cur.kind in ("vmem","ds") and prev.C & cur.wr: n = max(n, 7 if p8 else 3)
    if prev.kind == "vmem" and prev.wide_store:
        if cur.kind == "valu" and prev.store_data & cur.wr: n = max(n, 2)
        elif prev.store_data & cur.wr: n = max(n, 1)
    if prev.kind == "salu" and ("s", "m0") in prev.wr and cur.kind == "vmem" and ("s","m0") in cur.rd: n = max(n, 1)
    return n

def hazard_fix(lines):
    out = []; hist = []
    pos = 0; inserted = 0
    for l in lines:
        if l.endswith(":") or l.startswith((".", ";")):
            out.append(l); continue
        code = l.split(";")[0].strip()
        I = classify(code)
        req = 0
        for (P, ppos) in hist:
            d = pos - ppos - 1
            nn = need(P, I)
            if nn > d: req = max(req, nn - d)
        while req > 0:
            k = min(req, 16)
            out.append(f"s_nop {k-1}"); pos += k; req -= k; inserted += k
        out.append(l)
        hist.append((I, pos + I.states - 1 if I.kind == "nop" else pos))
        pos += I.states
        hist = [(P, pp) for (P, pp) in hist if pos - pp < 24]
    return out, inserted

class K:
    def __init__(self, name, grid, block=256, lds=0, nv=64, ns=96, acc=None):
        self.name = name; self.grid = grid; self.block = block; self.lds = lds
        self.nv = nv; self.ns = ns; self.acc = acc
        self.lines = []; self.uid = 0; self.tail = []
    def __call__(self, s):
        for l in s.split("\n"):
            l = l.strip()
            if l: self.lines.append(l)
    def label(self, base):
        self.uid += 1
        return f"L_{self.name}_{base}_{self.uid}"
    def text(self):
        lines, ins = hazard_fix(self.lines)
        self.inserted = ins
        body = "\n".join(("" if l.endswith(":") else "    ") + l for l in lines)
        acc = self.acc if self.acc is not None else (self.nv + 3)//4*4
        tail = "\n".join(self.tail)
        return f"""
.text
.globl {self.name}
.p2align 8
.type {self.name},@function
{self.name}:
{body}
{tail}
.section .rodata,"a"
.p2align 6
.amdhsa_kernel {self.name}
  .amdhsa_next_free_vgpr {self.nv}
  .amdhsa_next_free_sgpr {self.ns}
  .amdhsa_accum_offset {acc}
  .amdhsa_group_segment_fixed_size 0
  .amdhsa_kernarg_size 96
  .amdhsa_user_sgpr_count 2
  .amdhsa_user_sgpr_kernarg_segment_ptr 1
  .amdhsa_system_sgpr_workgroup_id_x 1
  .amdhsa_float_denorm_mode_32 3
.end_amdhsa_kernel
"""
def emit(kernels, header="", tables=""):
    out = header
    for k in kernels:
        out += f"; @launch kernel={k.name} grid=({k.grid},1,1) block=({k.block},1,1) lds={k.lds}\n"
    out += '.amdgcn_target "amdgcn-amd-amdhsa--gfx950"\n'
    for k in kernels:
        out += k.text()
    out += tables
    return out
```

```python
import numpy as np
from asmlib import *
WS_MOD  = 0x000000
WS_Z1   = 0x100000
WS_Z2   = 0x400000
WS_WT   = 0x700000
WS_X2   = 0xA00000
WS_H2   = 0xC00000
WS_WGU  = 0x1000000
WS_WD   = 0x1400000
WS_HH   = 0x1800000
def rbf_u16(x):
    x = np.ascontiguousarray(x, dtype=np.float32)
    u = x.view(np.uint32)
    return (((u + 0x7FFF + ((u >> 16) & 1)) >> 16) & 0xFFFF).astype(np.uint32)
def pk(lo, hi):
    return (rbf_u16(np.float32(lo)) | (rbf_u16(np.float32(hi)) << 16)).astype(np.uint32)
def f32u(x):
    return np.ascontiguousarray(x, dtype=np.float32).view(np.uint32)
def cosr(num, den):
    num = np.asarray(num) % den
    c = np.cos(2*np.pi*num/den)
    c[np.isclose(c, 0, atol=1e-12)] = 0.0
    return c
def sinr(num, den):
    num = np.asarray(num) % den
    s = np.sin(2*np.pi*num/den)
    s[np.isclose(s, 0, atol=1e-12)] = 0.0
    return s
L = np.arange(64); LI = L & 15; LQ = L >> 4
def table_asm(name, regs):
    assert len(regs) % 4 == 0
    out = f"\n.p2align 8\n.type {name},@object\n{name}:\n"
    for i in range(0, len(regs), 4):
        blk = np.stack(regs[i:i+4], axis=1).reshape(-1)
        for j in range(0, len(blk), 8):
            out += ".long " + ",".join(f"0x{int(v):08x}" for v in blk[j:j+8]) + "\n"
    out += f".size {name}, {len(regs)*256}\n"
    return out
def raw_table_asm(name, arr):
    arr = np.asarray(arr, dtype=np.uint32).reshape(-1)
    out = f"\n.p2align 8\n.type {name},@object\n{name}:\n"
    for j in range(0, len(arr), 8):
        out += ".long " + ",".join(f"0x{int(v):08x}" for v in arr[j:j+8]) + "\n"
    out += f".size {name}, {len(arr)*4}\n"
    return out
def getpc(k, sreg, sym, extra=0):
    lab = k.label("pc")
    k(f"s_getpc_b64 s[{sreg}:{sreg+1}]\n{lab}:\ns_add_u32 s{sreg}, s{sreg}, {sym}-{lab}+{extra}\ns_addc_u32 s{sreg+1}, s{sreg+1}, 0")
def addoff(k, reg, off):
    k(f"s_add_u32 s{reg}, s{reg}, {off}\ns_addc_u32 s{reg+1}, s{reg+1}, 0")
def srd(k, d, b, nbytes):
    k(f"s_mov_b32 s{d}, s{b}\ns_mov_b32 s{d+1}, s{b+1}\ns_mov_b32 s{d+2}, {nbytes}\ns_mov_b32 s{d+3}, 0x20000")
def reduce64_pair(k, a, b):
    for sh in (1, 2, 4, 8):
        k(f"v_add_f32_dpp v{a}, v{a}, v{a} row_shr:{sh} row_mask:0xf bank_mask:0xf bound_ctrl:0")
        k(f"v_add_f32_dpp v{b}, v{b}, v{b} row_shr:{sh} row_mask:0xf bank_mask:0xf bound_ctrl:0")
    k(f"v_add_f32_dpp v{a}, v{a}, v{a} row_bcast:15 row_mask:0xa bank_mask:0xf")
    k(f"v_add_f32_dpp v{b}, v{b}, v{b} row_bcast:15 row_mask:0xa bank_mask:0xf")
    k(f"v_add_f32_dpp v{a}, v{a}, v{a} row_bcast:31 row_mask:0xc bank_mask:0xf")
    k(f"v_add_f32_dpp v{b}, v{b}, v{b} row_bcast:31 row_mask:0xc bank_mask:0xf")
```

```python
from common import *
LDS_MOD = 8*32*4
def mod_issue(k, sg, R0=16):
    k(f"s_load_dwordx2 s[60:61], s[0:1], {KARG['c']}\ns_load_dwordx2 s[62:63], s[0:1], {KARG['wmod']}")
    k(f"""v_lshrrev_b32 v{R0+20}, 2, v0
v_mul_u32_u24 v{R0+21}, 6144, v{R0+20}
v_and_b32 v{R0+22}, 3, v0
v_lshlrev_b32 v{R0+22}, 4, v{R0+22}
v_add_u32 v{R0+21}, v{R0+21}, v{R0+22}
s_lshl_b32 s64, s{sg}, 6
v_add_u32 v{R0+21}, s64, v{R0+21}
v_lshlrev_b32 v{R0+20}, 1, v{R0+20}
s_waitcnt lgkmcnt(0)""")
    for i in range(4):
        k(f"s_add_u32 s66, s62, {i*128*6144}\ns_addc_u32 s67, s63, 0")
        k(f"global_load_dwordx4 v[{R0+4*i}:{R0+4*i+3}], v{R0+21}, s[66:67]")
    for i in range(4):
        k(f"global_load_ushort v{R0+16+i}, v{R0+20}, s[60:61] offset:{256*i}")
def mod_compute(k, sg, ws, R0=16, T=64, ldsbase=0, sc="", after_store=None):
    for i in range(4):
        c = R0+16+i
        k(f"v_lshlrev_b32 v{c}, 16, v{c}\nv_mul_f32 v{T+i}, 0xbfb8aa3b, v{c}")
    for i in range(4): k(f"v_exp_f32 v{T+i}, v{T+i}")
    for i in range(4): k(f"v_add_f32 v{T+i}, 1.0, v{T+i}")
    for i in range(4): k(f"v_rcp_f32 v{T+i}, v{T+i}")
    for i in range(4): k(f"v_mul_f32 v{T+i}, v{R0+16+i}, v{T+i}")
    for i in range(4): k(f"v_cvt_pk_bf16_f32 v{T+i}, v{T+i}, v{T+i}")
    for i in range(4): k(f"v_lshlrev_b32 v{R0+16+i}, 16, v{T+i}")
    for i in range(4):
        for j in range(4):
            k(f"v_lshlrev_b32 v{T+8+2*j}, 16, v{R0+4*i+j}\nv_and_b32 v{T+9+2*j}, 0xffff0000, v{R0+4*i+j}")
        s = R0+16+i
        for j in range(4):
            if i == 0:
                k(f"v_mul_f32 v{T+2*j}, v{T+8+2*j}, v{s}\nv_mul_f32 v{T+2*j+1}, v{T+9+2*j}, v{s}")
            else:
                k(f"v_fmac_f32 v{T+2*j}, v{T+8+2*j}, v{s}\nv_fmac_f32 v{T+2*j+1}, v{T+9+2*j}, v{s}")
    for sh in (4, 8):
        for j in range(8):
            k(f"v_add_f32_dpp v{T+j}, v{T+j}, v{T+j} row_ror:{sh} row_mask:0xf bank_mask:0xf")
    for sw in ("v_permlane16_swap_b32", "v_permlane32_swap_b32"):
        for j in range(8): k(f"v_mov_b32 v{T+8+j}, v{T+j}")
        for j in range(8): k(f"{sw} v{T+j}, v{T+8+j}")
        for j in range(8): k(f"v_add_f32 v{T+j}, v{T+j}, v{T+8+j}")
    k(f"""v_lshrrev_b32 v{T+8}, 6, v0
v_lshlrev_b32 v{T+8}, 7, v{T+8}
v_and_b32 v{T+9}, 3, v0
v_lshlrev_b32 v{T+9}, 5, v{T+9}
v_add_u32 v{T+8}, v{T+8}, v{T+9}
v_and_b32 v{T+9}, 60, v0
v_cmp_eq_u32 vcc, 0, v{T+9}
s_and_saveexec_b64 s[64:65], vcc
ds_write_b128 v{T+8}, v[{T}:{T+3}] offset:{ldsbase}
ds_write_b128 v{T+8}, v[{T+4}:{T+7}] offset:{ldsbase+16}
s_mov_b64 exec, s[64:65]
s_waitcnt lgkmcnt(0)
s_barrier""")
    lab = k.label("modw0")
    k(f"""v_cmp_gt_u32 vcc, 32, v0
s_and_saveexec_b64 s[64:65], vcc
s_cbranch_execz {lab}
v_lshlrev_b32 v{T+8}, 2, v0""")
    for w in range(8): k(f"ds_read_b32 v{T+w}, v{T+8} offset:{ldsbase+128*w}")
    k("s_waitcnt lgkmcnt(0)")
    k(f"""v_add_f32 v{T}, v{T}, v{T+1}
v_add_f32 v{T+2}, v{T+2}, v{T+3}
v_add_f32 v{T+4}, v{T+4}, v{T+5}
v_add_f32 v{T+6}, v{T+6}, v{T+7}
v_add_f32 v{T}, v{T}, v{T+2}
v_add_f32 v{T+4}, v{T+4}, v{T+6}
v_add_f32 v{T}, v{T}, v{T+4}
v_cvt_pk_bf16_f32 v{T}, v{T}, v{T}
v_lshlrev_b32 v{T}, 16, v{T}
v_add_f32 v{T+1}, 1.0, v{T}
v_cvt_pk_bf16_f32 v{T+1}, v{T+1}, v{T+1}
v_lshlrev_b32 v{T+1}, 16, v{T+1}
s_lshr_b32 s66, s{sg}, 4
s_cmp_eq_u32 s66, 1
s_cselect_b32 s67, 1, 0
s_cmp_eq_u32 s66, 4
s_cselect_b32 s67, 1, s67
s_cmp_eq_u32 s67, 1
s_cselect_b64 vcc, -1, 0
v_cndmask_b32 v{T}, v{T}, v{T+1}, vcc
s_lshl_b32 s66, s{sg}, 7
v_add_u32 v{T+8}, s66, v{T+8}
global_store_dword v{T+8}, v{T}, s[{ws}:{ws+1}] {sc}""")
    if after_store: after_store(k)
    k(f"{lab}:\ns_mov_b64 exec, s[64:65]")
def gen_mod(k):
    k(f"s_load_dwordx2 s[6:7], s[0:1], {KARG['ws']}")
    mod_issue(k, 2)
    k("s_waitcnt vmcnt(0)")
    mod_compute(k, 2, 6)
```

```python
from common import *
def p1_tables():
    regs = []
    for mt in range(2):
        for fn in (cosr, sinr):
            for r in range(4):
                d2 = 16*mt + 4*LQ + r
                regs.append(f32u(fn(d2*LI, 512)))
    for mt in range(2):
        for out in range(2):
            for jj in range(4):
                d2 = 16*mt + 4*LQ + jj
                c = cosr(d2*LI, 32); s = sinr(d2*LI, 32)
                regs.append(pk(c, s) if out == 0 else pk(-s, c))
    for fn, sg in ((cosr, 1), (sinr, -1)):
        for h in range(2):
            d1a = 4*LQ + 2*h; d1b = d1a + 1
            regs.append(pk(sg*fn(d1a*LI, 16), sg*fn(d1b*LI, 16)))
    return regs
def gen_p1(k, flagwait=None):
    k(f"s_load_dwordx2 s[4:5], s[0:1], {KARG['x']}\ns_load_dwordx2 s[6:7], s[0:1], {KARG['ws']}")
    getpc(k, 8, "tab_p1", 4096)
    k("""v_and_b32 v1, 63, v0
v_lshrrev_b32 v2, 6, v0
v_lshlrev_b32 v3, 4, v1
v_readfirstlane_b32 s10, v2
s_and_b32 s11, s2, 31
s_lshr_b32 s12, s2, 5
s_lshl_b32 s13, s12, 3
s_add_u32 s13, s13, s10
s_lshl_b32 s13, s13, 5
s_add_u32 s13, s13, s11
s_lshl_b32 s13, s13, 10
v_add_u32 v4, s13, v3
v_add_u32 v5, 4096, v3""")
    T = 40
    for i in range(8):
        k(f"global_load_dwordx4 v[{T+4*i}:{T+4*i+3}], v3, s[8:9] offset:{(i-4)*1024}")
    k(f"global_load_dwordx4 v[{T+32}:{T+35}], v5, s[8:9] offset:0")
    k("s_waitcnt lgkmcnt(0)")
    k("global_load_dwordx4 v[8:11], v4, s[4:5]")
    k("v_lshlrev_b32 v6, 5, v1")
    MA, MC = 76, 84
    if flagwait is None:
        k(f"global_load_dwordx4 v[{MA}:{MA+3}], v6, s[6:7] offset:0\nglobal_load_dwordx4 v[{MA+4}:{MA+7}], v6, s[6:7] offset:16")
        k(f"global_load_dwordx4 v[{MC}:{MC+3}], v6, s[6:7] offset:2048\nglobal_load_dwordx4 v[{MC+4}:{MC+7}], v6, s[6:7] offset:2064")
        k("s_waitcnt vmcnt(4)")
    else:
        k("s_waitcnt vmcnt(0)")
    for i in range(4):
        k(f"v_lshlrev_b32 v{12+2*i}, 16, v{8+i}\nv_and_b32 v{13+2*i}, 0xffff0000, v{8+i}")
    k("v_readfirstlane_b32 s14, v12")
    for i in range(4):
        k(f"v_pk_add_f32 v[{12+2*i}:{13+2*i}], v[{12+2*i}:{13+2*i}], s[14:15] op_sel_hi:[1,0] neg_lo:[0,1] neg_hi:[0,1]")
    k("""v_pk_add_f32 v[20:21], v[12:13], v[14:15]
v_pk_mul_f32 v[22:23], v[12:13], v[12:13]
v_pk_add_f32 v[24:25], v[16:17], v[18:19]
v_pk_fma_f32 v[22:23], v[14:15], v[14:15], v[22:23]
v_pk_add_f32 v[20:21], v[20:21], v[24:25]
v_pk_fma_f32 v[22:23], v[16:17], v[16:17], v[22:23]
v_add_f32 v20, v20, v21
v_pk_fma_f32 v[22:23], v[18:19], v[18:19], v[22:23]
v_add_f32 v22, v22, v23""")
    reduce64_pair(k, 20, 22)
    k("""v_mul_f32 v20, 0x3b000000, v20
v_mul_f32 v22, 0x3b000000, v22
v_fma_f32 v22, -v20, v20, v22
v_add_f32 v22, 0x3727c5ac, v22
v_rsq_f32 v22, v22
v_readlane_b32 s14, v20, 63
v_readlane_b32 s16, v22, 63""")
    if flagwait is not None:
        flagwait(k)
        k(f"global_load_dwordx4 v[{MA}:{MA+3}], v6, s[6:7] offset:0 sc1\nglobal_load_dwordx4 v[{MA+4}:{MA+7}], v6, s[6:7] offset:16 sc1")
        k(f"global_load_dwordx4 v[{MC}:{MC+3}], v6, s[6:7] offset:2048 sc1\nglobal_load_dwordx4 v[{MC+4}:{MC+7}], v6, s[6:7] offset:2064 sc1")
    for i in range(4):
        k(f"v_pk_add_f32 v[{12+2*i}:{13+2*i}], v[{12+2*i}:{13+2*i}], s[14:15] op_sel_hi:[1,0] neg_lo:[0,1] neg_hi:[0,1]")
    for i in range(4):
        k(f"v_pk_mul_f32 v[{12+2*i}:{13+2*i}], v[{12+2*i}:{13+2*i}], s[16:17] op_sel_hi:[1,0]")
    k("""s_mul_i32 s18, s10, 1280
v_lshrrev_b32 v7, 4, v1
v_lshlrev_b32 v26, 5, v7
v_add_u32 v26, v26, v3
v_add_u32 v26, s18, v26""")
    k("""v_mul_u32_u24 v27, 288, v7
v_bfe_u32 v28, v1, 2, 2
v_lshlrev_b32 v28, 6, v28
v_add_u32 v27, v27, v28
v_and_b32 v28, 3, v1
v_lshlrev_b32 v28, 3, v28
v_add_u32 v27, v27, v28
v_add_u32 v27, s18, v27""")
    k("s_waitcnt vmcnt(0)")
    for i in range(4):
        k(f"v_pk_fma_f32 v[{12+2*i}:{13+2*i}], v[{12+2*i}:{13+2*i}], v[{MC+2*i}:{MC+2*i+1}], v[{MA+2*i}:{MA+2*i+1}]")
    for i in range(4):
        k(f"v_cvt_pk_bf16_f32 v{8+i}, v{12+2*i}, v{13+2*i}")
    k("ds_write_b128 v26, v[8:11]\ns_waitcnt lgkmcnt(0)")
    k("ds_read_b64_tr_b16 v[12:13], v27\nds_read_b64_tr_b16 v[14:15], v27 offset:32")
    k("""v_and_b32 v32, 15, v1
v_cmp_eq_u32 vcc, 0, v32
v_mov_b32 v33, 0x3f80
v_mov_b32 v34, 0xbf80
v_cndmask_b32 v28, 0, v33, vcc
v_cndmask_b32 v29, 0, v34, vcc
v_mov_b32 v30, v28
v_mov_b32 v31, v29""")
    k("s_waitcnt lgkmcnt(0)")
    B1 = T + 32
    U = 96
    for mt in range(2):
        k(f"v_mfma_f32_16x16x16_bf16 v[{U+8*mt}:{U+8*mt+3}], v[{12+2*mt}:{13+2*mt}], v[{B1}:{B1+1}], 0")
        k(f"v_mfma_f32_16x16x16_bf16 v[{U+8*mt+4}:{U+8*mt+7}], v[{12+2*mt}:{13+2*mt}], v[{B1+2}:{B1+3}], 0")
    P = 112
    for mt in range(2):
        re = U+8*mt; im = re+4; c = T+8*mt; s = c+4
        for h in range(2):
            o = 2*h
            k(f"v_pk_mul_f32 v[{P+4*mt+o}:{P+4*mt+o+1}], v[{re+o}:{re+o+1}], v[{c+o}:{c+o+1}]")
            k(f"v_pk_mul_f32 v[{P+8+4*mt+o}:{P+8+4*mt+o+1}], v[{im+o}:{im+o+1}], v[{c+o}:{c+o+1}]")
            k(f"v_pk_fma_f32 v[{P+4*mt+o}:{P+4*mt+o+1}], v[{im+o}:{im+o+1}], v[{s+o}:{s+o+1}], v[{P+4*mt+o}:{P+4*mt+o+1}]")
            k(f"v_pk_fma_f32 v[{P+8+4*mt+o}:{P+8+4*mt+o+1}], v[{re+o}:{re+o+1}], v[{s+o}:{s+o+1}], v[{P+8+4*mt+o}:{P+8+4*mt+o+1}] neg_lo:[1,0,0] neg_hi:[1,0,0]")
    for mt in range(2):
        for r in range(4):
            k(f"v_cvt_pk_bf16_f32 v{12+4*mt+r}, v{P+4*mt+r}, v{P+8+4*mt+r}")
    A2 = T + 16
    X = 96
    k(f"v_mfma_f32_16x16x32_bf16 v[{X}:{X+3}], v[{A2}:{A2+3}], v[12:15], 0")
    k(f"v_mfma_f32_16x16x32_bf16 v[{X+4}:{X+7}], v[{A2+4}:{A2+7}], v[12:15], 0")
    k(f"v_mfma_f32_16x16x32_bf16 v[{X+8}:{X+11}], v[28:31], v[12:15], 0")
    k(f"v_mfma_f32_16x16x32_bf16 v[{X}:{X+3}], v[{A2+8}:{A2+11}], v[16:19], v[{X}:{X+3}]")
    k(f"v_mfma_f32_16x16x32_bf16 v[{X+4}:{X+7}], v[{A2+12}:{A2+15}], v[16:19], v[{X+4}:{X+7}]")
    k(f"v_mfma_f32_16x16x32_bf16 v[{X+8}:{X+11}], v[28:31], v[16:19], v[{X+8}:{X+11}]")
    LB = 10240; RS = 328
    k(f"""s_mul_i32 s18, s10, {RS*4}
s_add_u32 s18, s18, {LB}
v_and_b32 v32, 15, v1
v_mul_u32_u24 v33, 80, v7
v_add_u32 v32, v32, v33
v_lshlrev_b32 v32, 2, v32
v_add_u32 v32, s18, v32""")
    for r in range(4):
        k(f"v_cvt_pk_bf16_f32 v{8+r}, v{X+r}, v{X+4+r}")
    k(f"v_cvt_pk_bf16_f32 v33, v{X+8}, 0")
    for r in range(4):
        k(f"ds_write_b32 v32, v{8+r} offset:{64*r}")
    k(f"""v_mov_b32 v34, s18
s_mov_b64 s[20:21], exec
s_mov_b64 exec, 1
ds_write_b32 v34, v33 offset:{320*4}
s_mov_b64 exec, s[20:21]""")
    k("s_waitcnt lgkmcnt(0)\ns_barrier")
    k(f"""v_lshrrev_b32 v8, 1, v0
v_lshrrev_b32 v9, 6, v8
v_lshlrev_b32 v9, 4, v9
v_add_u32 v9, v9, v8
v_lshlrev_b32 v9, 2, v9
v_and_b32 v10, 1, v0
v_mul_u32_u24 v11, {4*RS*4}, v10
v_add_u32 v9, v9, v11
v_add_u32 v9, {LB}, v9""")
    for i in range(4):
        k(f"ds_read_b32 v{12+i}, v9 offset:{i*RS*4}")
    k(f"""s_lshl_b32 s18, s11, 8
s_lshl_b32 s19, s12, 5
s_add_u32 s18, s18, s19
s_add_u32 s18, s18, {WS_Z1}
v_lshlrev_b32 v8, 13, v8
v_lshlrev_b32 v10, 4, v10
v_add_u32 v8, v8, v10
v_add_u32 v8, s18, v8""")
    k(f"""v_mul_u32_u24 v11, {4*RS*4}, v0
v_add_u32 v11, {LB + 320*4}, v11
s_cmp_lg_u32 s10, 0
s_cbranch_scc1 L_p1_nony""")
    k("s_mov_b64 s[20:21], exec\ns_mov_b64 exec, 3")
    for i in range(4):
        k(f"ds_read_b32 v{16+i}, v11 offset:{i*RS*4}")
    k(f"""v_lshlrev_b32 v20, 4, v0
v_add_u32 v20, s18, v20
v_add_u32 v20, {256*8192}, v20
s_waitcnt lgkmcnt(0)
global_store_dwordx4 v20, v[16:19], s[6:7]
s_mov_b64 exec, s[20:21]
L_p1_nony:
s_waitcnt lgkmcnt(0)
global_store_dwordx4 v8, v[12:15], s[6:7]""")
```

```python
from common import *
def gen_t64(k, vt, vlane, tmp):
    k(f"""v_cvt_f32_u32 v{tmp}, v{vlane}
v_mul_f32 v{tmp}, 0x3c800000, v{tmp}
v_cos_f32 v{tmp+1}, v{tmp}
v_sin_f32 v{tmp}, v{tmp}
v_cvt_pk_bf16_f32 v{vt}, v{tmp+1}, v{tmp}""")
def derive_m2(k, dst, src, n, smask):
    for i in range(n):
        k(f"v_alignbit_b32 v{dst+i}, v{src+i}, v{src+i}, 16")
    for i in range(n):
        k(f"v_xor_b32 v{dst+i}, s{smask}, v{dst+i}")
def cmul_tw(k, dre, dim, re, im, c, s, n):
    for o in range(0, n, 2):
        k(f"v_pk_mul_f32 v[{dre+o}:{dre+o+1}], v[{re+o}:{re+o+1}], v[{c+o}:{c+o+1}]")
        k(f"v_pk_mul_f32 v[{dim+o}:{dim+o+1}], v[{im+o}:{im+o+1}], v[{c+o}:{c+o+1}]")
    for o in range(0, n, 2):
        k(f"v_pk_fma_f32 v[{dre+o}:{dre+o+1}], v[{im+o}:{im+o+1}], v[{s+o}:{s+o+1}], v[{dre+o}:{dre+o+1}]")
        k(f"v_pk_fma_f32 v[{dim+o}:{dim+o+1}], v[{re+o}:{re+o+1}], v[{s+o}:{s+o+1}], v[{dim+o}:{dim+o+1}] neg_lo:[1,0,0] neg_hi:[1,0,0]")
def gen_p2(k):
    k(f"s_load_dwordx2 s[6:7], s[0:1], {KARG['ws']}")
    k("""v_and_b32 v1, 63, v0
v_lshrrev_b32 v5, 6, v0
v_and_b32 v2, 15, v1
v_lshrrev_b32 v3, 4, v1
v_readfirstlane_b32 s10, v5
s_lshl_b32 s11, s2, 13""")
    k(f"""v_lshlrev_b32 v6, 8, v2
v_lshlrev_b32 v7, 4, v3
v_add_u32 v6, v6, v7
s_add_u32 s12, s11, {WS_Z1}
v_add_u32 v8, s12, v6
v_add_u32 v9, 4096, v8""")
    k(f"""s_lshl_b32 s13, s10, 6
s_add_u32 s13, s13, s11
s_add_u32 s13, s13, {WS_WT}
v_lshlrev_b32 v10, 2, v2
v_lshlrev_b32 v11, 10, v3
v_add_u32 v10, v10, v11
v_add_u32 v10, s13, v10
v_add_u32 v11, 4096, v10""")
    k("s_waitcnt lgkmcnt(0)")
    for mt in range(2):
        for ks in range(4):
            k(f"global_load_dwordx4 v[{16+16*mt+4*ks}:{16+16*mt+4*ks+3}], v{8+mt}, s[6:7] offset:{64*ks}")
    for tt in range(2):
        for r in range(4):
            k(f"global_load_dword v{48+4*tt+r}, v{10+tt}, s[6:7] offset:{256*r}")
    gen_t64(k, 4, 1, 12)
    k("s_mov_b32 s14, 0x8000")
    F64, F64b, F32, F32b, TC, TS = 64, 80, 96, 112, 128, 136
    k("""s_lshl_b32 s15, s10, 4
v_add_u32 v12, s15, v2
v_lshlrev_b32 v13, 2, v12
v_lshlrev_b32 v14, 2, v3
v_mul_u32_u24 v14, v14, v13""")
    for ks in range(4):
        for jj in range(4):
            k(f"v_mad_u32_u24 v{F64b+4*ks+jj}, v13, {16*ks+jj}, v14")
    for i in range(16):
        k(f"ds_bpermute_b32 v{F64+i}, v{F64b+i}, v4")
    for tile in range(2):
        k(f"v_lshlrev_b32 v56, 3, v2\nv_add_u32 v56, {128*tile}, v56\nv_lshlrev_b32 v57, 2, v3\nv_mul_u32_u24 v57, v57, v56")
        for ks in range(2):
            for jj in range(4):
                k(f"v_mad_u32_u24 v{F32b+8*tile+4*ks+jj}, v56, {16*ks+jj}, v57")
    for i in range(16):
        k(f"ds_bpermute_b32 v{F32+i}, v{F32b+i}, v4")
    k("""v_cvt_f32_u32 v58, v12
v_mul_f32 v58, 0x3a000000, v58
v_lshlrev_b32 v59, 2, v3
v_cvt_f32_u32 v59, v59
v_mul_f32 v59, v59, v58""")
    for mt in range(2):
        for r in range(4):
            k(f"s_mov_b32 s16, {hex(int(f32u(np.float32(16*mt+r))))}\nv_fma_f32 v{TS+4*mt+r}, v58, s16, v59")
    for i in range(8):
        k(f"v_cos_f32 v{TC+i}, v{TS+i}")
    for i in range(8):
        k(f"v_sin_f32 v{TS+i}, v{TS+i}")
    k(f"""s_mov_b32 s16, {hex(int(f32u(np.float32(2**-9.5))))}
s_and_b32 s17, s2, 255
s_cmp_eq_u32 s17, 0
s_cselect_b32 s16, {hex(int(f32u(np.float32(2**-10))))}, s16""")
    for i in range(0, 8, 2):
        k(f"v_pk_mul_f32 v[{TC+i}:{TC+i+1}], v[{TC+i}:{TC+i+1}], s[16:17] op_sel_hi:[1,0]")
        k(f"v_pk_mul_f32 v[{TS+i}:{TS+i+1}], v[{TS+i}:{TS+i+1}], s[16:17] op_sel_hi:[1,0]")
    k("s_waitcnt lgkmcnt(0)")
    derive_m2(k, F64b, F64, 16, 14)
    derive_m2(k, F32b, F32, 16, 14)
    k("""v_mul_u32_u24 v60, 1088, v3
v_lshlrev_b32 v61, 2, v12
v_add_u32 v60, v60, v61
v_mul_u32_u24 v61, 272, v2
v_lshlrev_b32 v62, 4, v3
v_add_u32 v61, v61, v62""")
    D1r, D1i = 160, 168
    k("s_waitcnt vmcnt(8)")
    for ks in range(4):
        for mt in range(2):
            a = 16+16*mt+4*ks
            c0 = "0" if ks == 0 else f"v[{D1r+4*mt}:{D1r+4*mt+3}]"
            c1 = "0" if ks == 0 else f"v[{D1i+4*mt}:{D1i+4*mt+3}]"
            k(f"v_mfma_f32_16x16x32_bf16 v[{D1r+4*mt}:{D1r+4*mt+3}], v[{a}:{a+3}], v[{F64+4*ks}:{F64+4*ks+3}], {c0}")
            k(f"v_mfma_f32_16x16x32_bf16 v[{D1i+4*mt}:{D1i+4*mt+3}], v[{a}:{a+3}], v[{F64b+4*ks}:{F64b+4*ks+3}], {c1}")
    WR, WI = 144, 152
    k("s_waitcnt vmcnt(0)")
    for i in range(8):
        k(f"v_lshlrev_b32 v{WR+i}, 16, v{48+i}\nv_and_b32 v{WI+i}, 0xffff0000, v{48+i}")
    Pr, Pi = 176, 184
    cmul_tw(k, Pr, Pi, D1r, D1i, TC, TS, 8)
    for i in range(8):
        k(f"v_cvt_pk_bf16_f32 v{16+i}, v{Pr+i}, v{Pi+i}")
    def f32stage():
        for ks in range(2):
            for tt in range(2):
                c0 = "0" if ks == 0 else f"v[{D1r+4*tt}:{D1r+4*tt+3}]"
                c1 = "0" if ks == 0 else f"v[{D1i+4*tt}:{D1i+4*tt+3}]"
                k(f"v_mfma_f32_16x16x32_bf16 v[{D1r+4*tt}:{D1r+4*tt+3}], v[{F32+8*tt+4*ks}:{F32+8*tt+4*ks+3}], v[{16+4*ks}:{16+4*ks+3}], {c0}")
                k(f"v_mfma_f32_16x16x32_bf16 v[{D1i+4*tt}:{D1i+4*tt+3}], v[{F32b+8*tt+4*ks}:{F32b+8*tt+4*ks+3}], v[{16+4*ks}:{16+4*ks+3}], {c1}")
    f32stage()
    for o in range(0, 8, 2):
        k(f"v_pk_mul_f32 v[{Pr+o}:{Pr+o+1}], v[{D1r+o}:{D1r+o+1}], v[{WR+o}:{WR+o+1}]")
        k(f"v_pk_mul_f32 v[{Pi+o}:{Pi+o+1}], v[{D1r+o}:{D1r+o+1}], v[{WI+o}:{WI+o+1}] neg_lo:[1,0] neg_hi:[1,0]")
    for o in range(0, 8, 2):
        k(f"v_pk_fma_f32 v[{Pr+o}:{Pr+o+1}], v[{D1i+o}:{D1i+o+1}], v[{WI+o}:{WI+o+1}], v[{Pr+o}:{Pr+o+1}] neg_lo:[1,0,0] neg_hi:[1,0,0]")
        k(f"v_pk_fma_f32 v[{Pi+o}:{Pi+o+1}], v[{D1i+o}:{D1i+o+1}], v[{WR+o}:{WR+o+1}], v[{Pi+o}:{Pi+o+1}] neg_lo:[1,0,0] neg_hi:[1,0,0]")
    for i in range(8):
        k(f"v_cvt_pk_bf16_f32 v{16+i}, v{Pr+i}, v{Pi+i}")
    f32stage()
    cmul_tw(k, Pr, Pi, D1r, D1i, TC, TS, 8)
    for i in range(8):
        k(f"v_cvt_pk_bf16_f32 v{16+i}, v{Pr+i}, v{Pi+i}")
    for mt in range(2):
        for r in range(4):
            k(f"ds_write_b32 v60, v{16+4*mt+r} offset:{(16*mt+r)*272}")
    k("s_waitcnt lgkmcnt(0)\ns_barrier")
    for nt in range(2):
        for ks in range(4):
            k(f"ds_read_b128 v[{24+16*nt+4*ks}:{24+16*nt+4*ks+3}], v61 offset:{nt*4352+ks*64}")
    k(f"""s_lshl_b32 s13, s10, 6
s_add_u32 s13, s13, s11
s_add_u32 s13, s13, {WS_Z2}
v_add_u32 v8, s13, v6
v_add_u32 v9, 4096, v8""")
    for ks in range(4):
        k(f"s_waitcnt lgkmcnt({max(0, 0)})") if ks == 0 else None
        for nt in range(2):
            b = 24+16*nt+4*ks
            c0 = "0" if ks == 0 else f"v[{D1r+4*nt}:{D1r+4*nt+3}]"
            c1 = "0" if ks == 0 else f"v[{D1i+4*nt}:{D1i+4*nt+3}]"
            k(f"v_mfma_f32_16x16x32_bf16 v[{D1r+4*nt}:{D1r+4*nt+3}], v[{F64+4*ks}:{F64+4*ks+3}], v[{b}:{b+3}], {c0}")
            k(f"v_mfma_f32_16x16x32_bf16 v[{D1i+4*nt}:{D1i+4*nt+3}], v[{F64b+4*ks}:{F64b+4*ks+3}], v[{b}:{b+3}], {c1}")
    for i in range(8):
        k(f"v_cvt_pk_bf16_f32 v{16+i}, v{D1r+i}, v{D1i+i}")
    for nt in range(2):
        k(f"global_store_dwordx4 v{8+nt}, v[{16+4*nt}:{16+4*nt+3}], s[6:7]")
```

```python
from common import *
from p2 import gen_t64, derive_m2, cmul_tw
LDS_P3_V = 0
LDS_P3_H = 8*584*4
LDS_P3 = LDS_P3_H + 8192
def gen_p3(k, sc=""):
    k(f"s_load_dwordx2 s[4:5], s[0:1], {KARG['x']}\ns_load_dwordx2 s[6:7], s[0:1], {KARG['ws']}")
    k("""v_and_b32 v1, 63, v0
v_lshrrev_b32 v5, 6, v0
v_and_b32 v2, 15, v1
v_lshrrev_b32 v3, 4, v1
v_readfirstlane_b32 s10, v5
s_and_b32 s11, s2, 31
s_lshr_b32 s12, s2, 5""")
    k(f"""v_lshrrev_b32 v6, 3, v2
v_lshlrev_b32 v6, 13, v6
v_lshlrev_b32 v7, 19, v3
v_add_u32 v6, v6, v7
v_and_b32 v7, 7, v2
v_lshlrev_b32 v7, 2, v7
v_add_u32 v6, v6, v7
s_lshl_b32 s13, s10, 14
s_lshl_b32 s14, s11, 8
s_lshl_b32 s15, s12, 5
s_add_u32 s14, s14, s15
s_add_u32 s14, s14, {WS_Z2}
s_add_u32 s13, s13, s14
v_add_u32 v6, s13, v6""")
    k(f"""s_lshl_b32 s15, s10, 2
s_add_u32 s15, s15, s14
s_add_u32 s15, s15, {256*8192}
v_mov_b32 v7, s15""")
    k("""s_lshl_b32 s16, s12, 3
s_add_u32 s16, s16, s10
s_lshl_b32 s17, s16, 5
s_add_u32 s17, s17, s11
s_lshl_b32 s17, s17, 10
v_lshlrev_b32 v8, 6, v2
v_lshlrev_b32 v9, 3, v3
v_add_u32 v8, v8, v9
v_lshlrev_b32 v10, 1, v8
v_add_u32 v9, s17, v8""")
    k("s_waitcnt lgkmcnt(0)")
    for jj in range(4):
        k(f"s_add_u32 s{20+2*jj}, s6, {jj*131072}\ns_addc_u32 s{21+2*jj}, s7, 0")
    for jj in range(4):
        k(f"global_load_dword v{16+jj}, v6, s[{20+2*jj}:{21+2*jj}] {sc}")
    k(f"global_load_dword v20, v7, s[6:7] {sc}")
    k("global_load_dwordx2 v[22:23], v9, s[4:5]\nglobal_load_dwordx2 v[24:25], v9, s[4:5] offset:32")
    GA, SB, CB = 28, 36, 44
    k("v_add_u32 v11, 4096, v10")
    for T in range(2):
        k(f"global_load_dwordx4 v[{GA+4*T}:{GA+4*T+3}], v11, s[6:7] offset:{64*T} {sc}")
        k(f"global_load_dwordx4 v[{SB+4*T}:{SB+4*T+3}], v11, s[6:7] offset:{2048+64*T} {sc}")
    k("v_add_u32 v11, 8192, v10")
    for T in range(2):
        k(f"global_load_dwordx4 v[{CB+4*T}:{CB+4*T+3}], v11, s[6:7] offset:{64*T} {sc}")
    gen_t64(k, 4, 1, 12)
    k("s_mov_b32 s18, 0x8000")
    A1, A1b, B2, TC, TS = 56, 64, 72, 76, 84
    for T in range(2):
        k(f"v_lshlrev_b32 v12, 3, v2\nv_add_u32 v12, {128*T}, v12\nv_lshlrev_b32 v13, 2, v3\nv_mul_u32_u24 v13, v13, v12")
        for jj in range(4):
            k(f"v_mad_u32_u24 v{A1b+4*T+jj}, v12, {jj}, v13")
    k("v_lshlrev_b32 v12, 4, v2\nv_lshlrev_b32 v13, 2, v3\nv_mul_u32_u24 v13, v13, v12")
    for jj in range(4):
        k(f"v_mad_u32_u24 v{TC+jj}, v12, {jj}, v13")
    for i in range(8):
        k(f"ds_bpermute_b32 v{A1+i}, v{A1b+i}, v4")
    for jj in range(4):
        k(f"ds_bpermute_b32 v{B2+jj}, v{TC+jj}, v4")
    k("""v_lshrrev_b32 v12, 3, v2
s_lshl_b32 s19, s10, 1
v_add_u32 v12, s19, v12
v_cvt_f32_u32 v14, v12
v_mul_f32 v14, 0x3b000000, v14
v_lshlrev_b32 v13, 2, v3
v_cvt_f32_u32 v13, v13
v_mul_f32 v13, v13, v14""")
    k("s_waitcnt lgkmcnt(0)")
    for T in range(2):
        for r in range(4):
            k(f"s_mov_b32 s19, {hex(int(f32u(np.float32(16*T+r))))}\nv_fma_f32 v{TS+4*T+r}, v14, s19, v13")
    for i in range(8):
        k(f"v_cos_f32 v{TC+i}, v{TS+i}")
    for i in range(8):
        k(f"v_sin_f32 v{TS+i}, v{TS+i}")
    derive_m2(k, A1b, A1, 8, 18)
    k(f"""v_and_b32 v15, 7, v2
v_mul_u32_u24 v15, {584*4}, v15
v_mul_u32_u24 v12, 144, v12
v_add_u32 v15, v15, v12
v_lshlrev_b32 v12, 4, v3
v_add_u32 v15, v15, v12""")
    k(f"""s_mul_i32 s19, s10, {584*4}
v_mul_u32_u24 v21, 576, v3
v_lshlrev_b32 v12, 2, v2
v_add_u32 v21, v21, v12
v_add_u32 v21, s19, v21""")
    Vr, Vi = 96, 104
    k("s_waitcnt vmcnt(9)")
    for T in range(2):
        k(f"v_mfma_f32_16x16x32_bf16 v[{Vr+4*T}:{Vr+4*T+3}], v[{A1+4*T}:{A1+4*T+3}], v[16:19], 0")
        k(f"v_mfma_f32_16x16x32_bf16 v[{Vi+4*T}:{Vi+4*T+3}], v[{A1b+4*T}:{A1b+4*T+3}], v[16:19], 0")
    Pr, Pi = 112, 120
    cmul_tw(k, Pr, Pi, Vr, Vi, TC, TS, 8)
    for i in range(8):
        k(f"v_cvt_pk_bf16_f32 v{Vr+i}, v{Pr+i}, v{Pi+i}")
    for T in range(2):
        k(f"ds_write_b128 v15, v[{Vr+4*T}:{Vr+4*T+3}] offset:{64*T}")
    k("s_waitcnt lgkmcnt(0)\ns_barrier")
    for T in range(2):
        for jj in range(4):
            k(f"ds_read_b32 v{Vi+4*T+jj}, v21 offset:{jj*144+T*64}")
    k("s_waitcnt vmcnt(8)")
    k(f"v_lshlrev_b32 v20, 16, v20")
    for T in range(2):
        for r in range(4):
            if r & 1: k(f"v_sub_f32 v{Pr+4*T+r}, 0, v20")
            else: k(f"v_mov_b32 v{Pr+4*T+r}, v20")
    k("s_waitcnt lgkmcnt(0)")
    for T in range(2):
        k(f"v_mfma_f32_16x16x32_bf16 v[{Pr+4*T}:{Pr+4*T+3}], v[{Vi+4*T}:{Vi+4*T+3}], v[{B2}:{B2+3}], v[{Pr+4*T}:{Pr+4*T+3}]")
    k("s_waitcnt vmcnt(0)")
    for T in range(2):
        for h in range(2):
            k(f"v_lshlrev_b32 v{Vr+4*T+2*h}, 16, v{22+2*T+h}\nv_and_b32 v{Vr+4*T+2*h+1}, 0xffff0000, v{22+2*T+h}")
    for o in range(0, 8, 2):
        k(f"v_pk_fma_f32 v[{Vr+o}:{Vr+o+1}], v[{Pr+o}:{Pr+o+1}], v[{GA+o}:{GA+o+1}], v[{Vr+o}:{Vr+o+1}]")
    for i in range(4):
        k(f"v_cvt_pk_bf16_f32 v{22+i}, v{Vr+2*i}, v{Vr+2*i+1}")
    k(f"""s_lshl_b32 s19, s11, 6
s_add_u32 s19, s19, s16
s_lshl_b32 s19, s19, 10
s_add_u32 s19, s19, {WS_X2}
v_add_u32 v9, s19, v8""")
    k(f"global_store_dwordx2 v9, v[22:23], s[6:7] {sc}\nglobal_store_dwordx2 v9, v[24:25], s[6:7] offset:32 {sc}")
    for i in range(4):
        k(f"v_lshlrev_b32 v{Vr+2*i}, 16, v{22+i}\nv_and_b32 v{Vr+2*i+1}, 0xffff0000, v{22+i}")
    k(f"v_readfirstlane_b32 s30, v{Vr}")
    for o in range(0, 8, 2):
        k(f"v_pk_add_f32 v[{Vr+o}:{Vr+o+1}], v[{Vr+o}:{Vr+o+1}], s[30:31] op_sel_hi:[1,0] neg_lo:[0,1] neg_hi:[0,1]")
    V = Vr
    k(f"""v_pk_add_f32 v[120:121], v[{V}:{V+1}], v[{V+2}:{V+3}]
v_pk_mul_f32 v[122:123], v[{V}:{V+1}], v[{V}:{V+1}]
v_pk_add_f32 v[124:125], v[{V+4}:{V+5}], v[{V+6}:{V+7}]
v_pk_fma_f32 v[122:123], v[{V+2}:{V+3}], v[{V+2}:{V+3}], v[122:123]
v_pk_add_f32 v[120:121], v[120:121], v[124:125]
v_pk_fma_f32 v[122:123], v[{V+4}:{V+5}], v[{V+4}:{V+5}], v[122:123]
v_add_f32 v120, v120, v121
v_pk_fma_f32 v[122:123], v[{V+6}:{V+7}], v[{V+6}:{V+7}], v[122:123]
v_add_f32 v122, v122, v123""")
    reduce64_pair(k, 120, 122)
    k("""v_mul_f32 v120, 0x3b000000, v120
v_mul_f32 v122, 0x3b000000, v122
v_fma_f32 v122, -v120, v120, v122
v_add_f32 v122, 0x3727c5ac, v122
v_rsq_f32 v122, v122
v_readlane_b32 s30, v120, 63
v_readlane_b32 s32, v122, 63""")
    for o in range(0, 8, 2):
        k(f"v_pk_add_f32 v[{V+o}:{V+o+1}], v[{V+o}:{V+o+1}], s[30:31] op_sel_hi:[1,0] neg_lo:[0,1] neg_hi:[0,1]")
    for o in range(0, 8, 2):
        k(f"v_pk_mul_f32 v[{V+o}:{V+o+1}], v[{V+o}:{V+o+1}], s[32:33] op_sel_hi:[1,0]")
    for o in range(0, 8, 2):
        k(f"v_pk_fma_f32 v[{V+o}:{V+o+1}], v[{V+o}:{V+o+1}], v[{CB+o}:{CB+o+1}], v[{SB+o}:{SB+o+1}]")
    for i in range(4):
        k(f"v_cvt_pk_bf16_f32 v{16+i}, v{V+2*i}, v{V+2*i+1}")
    k(f"""v_lshlrev_b32 v12, 2, v2
v_add_u32 v12, v12, v3
v_add_u32 v13, s10, v12
v_and_b32 v13, 7, v13
v_lshlrev_b32 v13, 4, v13
v_lshlrev_b32 v12, 7, v12
v_add_u32 v12, v12, v13
v_add_u32 v12, {LDS_P3_H}, v12
ds_write_b128 v12, v[16:19]""")
    k(f"""v_lshrrev_b32 v12, 3, v0
v_add_u32 v13, v12, v0
v_and_b32 v13, 7, v13
v_lshlrev_b32 v13, 4, v13
v_lshlrev_b32 v14, 7, v12
v_add_u32 v13, v13, v14
v_add_u32 v13, {LDS_P3_H}, v13""")
    k(f"""s_lshr_b32 s19, s11, 1
s_lshl_b32 s19, s19, 17
s_and_b32 s20, s11, 1
s_lshl_b32 s20, s20, 1
s_lshr_b32 s21, s12, 2
s_add_u32 s20, s20, s21
s_lshl_b32 s20, s20, 15
s_add_u32 s19, s19, s20
s_and_b32 s21, s12, 3
s_lshl_b32 s21, s21, 7
s_add_u32 s19, s19, s21
s_add_u32 s19, s19, {WS_H2}
v_lshlrev_b32 v14, 9, v12
v_and_b32 v15, 7, v0
v_lshlrev_b32 v15, 4, v15
v_add_u32 v14, v14, v15
v_add_u32 v14, s19, v14""")
    k("s_waitcnt lgkmcnt(0)\ns_barrier\nds_read_b128 v[16:19], v13\ns_waitcnt lgkmcnt(0)")
    k(f"global_store_dwordx4 v14, v[16:19], s[6:7] {sc}")
```

```python
from common import *
def p4_unit(k, sg):
    k(f"""s_and_b32 s22, s{sg}, 7
s_lshr_b32 s23, s{sg}, 3
s_lshr_b32 s20, s22, 1
s_lshl_b32 s20, s20, 2
s_and_b32 s24, s23, 3
s_add_u32 s20, s20, s24
s_and_b32 s21, s22, 1
s_mul_i32 s21, s21, 7
s_lshr_b32 s24, s23, 2
s_add_u32 s21, s21, s24""")
LDS_P4 = 131072
def gen_p4(k):
    k(f"s_load_dwordx2 s[6:7], s[0:1], {KARG['ws']}")
    k("""v_and_b32 v1, 63, v0
v_lshrrev_b32 v2, 6, v0
v_lshlrev_b32 v3, 4, v1
v_readfirstlane_b32 s10, v2""")
    p4_unit(k, 2)
    k(f"""s_lshl_b32 s25, s21, 3
s_add_u32 s25, s25, s10
s_lshl_b32 s25, s25, 15
s_add_u32 s25, s25, {WS_WGU}
s_lshl_b32 s26, s20, 17
s_add_u32 s26, s26, {WS_H2}
s_waitcnt lgkmcnt(0)
s_add_u32 s12, s6, s25
s_addc_u32 s13, s7, 0
s_mov_b32 s14, 32768
s_mov_b32 s15, 0x20000
s_add_u32 s16, s6, s26
s_addc_u32 s17, s7, 0
s_mov_b32 s18, 131072
s_mov_b32 s19, 0x20000""")
    W = 128; B = 96; ACC = 32
    for c in range(4):
        for t in range(8*c, 8*c+8):
            k(f"s_mov_b32 s27, {(t>>2)*4096}\nbuffer_load_dwordx4 v[{W+4*t}:{W+4*t+3}], v3, s[12:15], s27 offen offset:{(t&3)*1024}")
        for i in range(4):
            k(f"""s_lshr_b32 s27, s10, 1
s_lshl_b32 s27, s27, 15
s_and_b32 s28, s10, 1
s_lshl_b32 s28, s28, 12
s_add_u32 s27, s27, s28
s_add_u32 s27, s27, {(8*c+i)*1024}
s_mov_b32 m0, s27
buffer_load_dwordx4 v3, s[16:19], s27 offen lds""")
    seq = [(t, R) for t in range(32) for R in range(4)]
    DEPTH = 6
    def rd(idx):
        t, R = seq[idx]
        slot = idx % 8
        k(f"ds_read_b128 v[{B+4*slot}:{B+4*slot+3}], v{4 + (1 if R >= 2 else 0)} offset:{((R&1)*32+t)*1024}")
    k("v_mov_b32 v4, v3\nv_add_u32 v5, 65536, v3")
    k(f"s_waitcnt vmcnt({36})\ns_barrier")
    for idx in range(DEPTH): rd(idx)
    for idx, (t, R) in enumerate(seq):
        nxt = idx + DEPTH
        if nxt < len(seq):
            tn = seq[nxt][0]
            if tn % 8 == 0 and seq[nxt][1] == 0:
                c = tn // 8
                k(f"s_waitcnt vmcnt({36 - 12*c})\ns_barrier")
            rd(nxt)
            k(f"s_waitcnt lgkmcnt({DEPTH})")
        else:
            k(f"s_waitcnt lgkmcnt({len(seq)-1-idx})")
        b = B + 4*(idx % 8)
        cc = "0" if t == 0 else f"v[{ACC+16*R}:{ACC+16*R+15}]"
        k(f"v_mfma_f32_32x32x16_bf16 v[{ACC+16*R}:{ACC+16*R+15}], v[{W+4*t}:{W+4*t+3}], v[{b}:{b+3}], {cc}")
    k(f"""s_lshl_b32 s25, s20, 2
s_mul_i32 s25, s25, 112
s_lshl_b32 s26, s21, 3
s_add_u32 s25, s25, s26
s_add_u32 s25, s25, s10
s_lshl_b32 s25, s25, 10
s_add_u32 s25, s25, {WS_HH}
v_add_u32 v6, s25, v3""")
    for R in range(4):
        a = ACC + 16*R
        for o in range(0, 8, 2):
            k(f"v_pk_mul_f32 v[{a+o}:{a+o+1}], v[{a+o}:{a+o+1}], v[{a+8+o}:{a+8+o+1}]")
        for i in range(4):
            k(f"v_cvt_pk_bf16_f32 v{a+8+i}, v{a+2*i}, v{a+2*i+1}")
        k(f"v_add_u32 v7, {R*112*1024}, v6\nglobal_store_dwordx4 v7, v[{a+8}:{a+11}], s[6:7]")
```

```python
from common import *
LDS_P5 = 8*16640
def p5_unit(k, sg):
    k(f"""s_and_b32 s22, s{sg}, 7
s_lshr_b32 s23, s{sg}, 3
s_lshl_b32 s20, s22, 2
s_and_b32 s24, s23, 3
s_add_u32 s20, s20, s24
s_lshr_b32 s21, s23, 2""")
def p5_reduce_epilogue(k, ACC, sc=""):
    k("s_mul_i32 s25, s10, 16640\ns_mov_b32 m0, s25")
    for idx in range(4):
        for i in range(4):
            for r in range(4):
                off = ((idx*4+i)*2 + (r >> 1))*256 + (r & 1)*(8192+128)
                k(f"ds_write_addtid_b32 v{ACC+16*idx+4*i+r} offset:{off}")
    k("""v_and_b32 v8, 15, v0
v_lshrrev_b32 v9, 4, v0
v_lshrrev_b32 v10, 3, v8
v_lshlrev_b32 v10, 11, v10
v_and_b32 v11, 7, v8
v_lshlrev_b32 v11, 4, v11
v_add_u32 v10, v10, v11
v_lshrrev_b32 v11, 3, v9
v_lshlrev_b32 v11, 9, v11
v_add_u32 v10, v10, v11
v_bfe_u32 v11, v9, 2, 1
v_lshlrev_b32 v11, 7, v11
v_add_u32 v10, v10, v11
v_bfe_u32 v11, v9, 1, 1
v_lshlrev_b32 v11, 8, v11
v_add_u32 v10, v10, v11
v_and_b32 v11, 1, v9
v_mul_u32_u24 v11, 8320, v11
v_add_u32 v10, v10, v11""")
    k(f"""s_lshl_b32 s25, s20, 16
s_lshl_b32 s26, s21, 7
s_add_u32 s25, s25, s26
s_add_u32 s25, s25, {WS_X2}
v_lshlrev_b32 v11, 10, v9
v_lshlrev_b32 v12, 3, v8
v_add_u32 v11, v11, v12
v_add_u32 v11, s25, v11
v_add_u32 v13, 32768, v11
s_lshl_b32 s26, s21, 8
s_add_u32 s26, s26, {WS_MOD + 5*2048}
v_lshlrev_b32 v14, 4, v8
v_add_u32 v14, s26, v14""")
    k(f"global_load_dwordx2 v[16:17], v11, s[6:7] {sc}\nglobal_load_dwordx2 v[18:19], v13, s[6:7] {sc}\nglobal_load_dwordx4 v[20:23], v14, s[6:7] {sc}")
    k(f"""s_lshl_b32 s25, s20, 10
s_lshl_b32 s26, s21, 7
s_add_u32 s25, s25, s26
v_lshlrev_b32 v15, 15, v9
v_add_u32 v15, v15, v12
v_add_u32 v15, s25, v15
v_add_u32 v24, {32*32*1024}, v15""")
    k("v_add_u32 v25, 65536, v10")
    k("s_waitcnt lgkmcnt(0)\ns_barrier")
    P = 64
    for si in range(2):
        for kq in range(8):
            base = kq*16640 + si*4096
            if base + 0 < 65536:
                k(f"ds_read_b128 v[{P+32*si+4*kq}:{P+32*si+4*kq+3}], v10 offset:{base}")
            else:
                k(f"ds_read_b128 v[{P+32*si+4*kq}:{P+32*si+4*kq+3}], v25 offset:{base-65536}")
    k("s_waitcnt vmcnt(0)")
    for si in range(2):
        k(f"s_waitcnt lgkmcnt({8 if si == 0 else 0})")
        b = P + 32*si
        for st in (1, 2, 4):
            for kq in range(0, 8, 2*st):
                for o in (0, 2):
                    k(f"v_pk_add_f32 v[{b+4*kq+o}:{b+4*kq+o+1}], v[{b+4*kq+o}:{b+4*kq+o+1}], v[{b+4*(kq+st)+o}:{b+4*(kq+st)+o+1}]")
        x = 16 + 2*si
        k(f"""v_lshlrev_b32 v26, 16, v{x}
v_and_b32 v27, 0xffff0000, v{x}
v_lshlrev_b32 v28, 16, v{x+1}
v_and_b32 v29, 0xffff0000, v{x+1}
v_pk_fma_f32 v[26:27], v[{b}:{b+1}], v[20:21], v[26:27]
v_pk_fma_f32 v[28:29], v[{b+2}:{b+3}], v[22:23], v[28:29]
v_cvt_pk_bf16_f32 v{30+2*si}, v26, v27
v_cvt_pk_bf16_f32 v{31+2*si}, v28, v29""")
        k(f"global_store_dwordx2 v{15 if si == 0 else 24}, v[{30+2*si}:{31+2*si}], s[8:9]")
def gen_p5(k):
    k(f"s_load_dwordx2 s[6:7], s[0:1], {KARG['ws']}\ns_load_dwordx2 s[8:9], s[0:1], {KARG['out']}")
    k("""v_and_b32 v1, 63, v0
v_lshrrev_b32 v2, 6, v0
v_lshlrev_b32 v3, 4, v1
v_readfirstlane_b32 s10, v2""")
    p5_unit(k, 2)
    k(f"""s_mul_i32 s25, s21, 112
s_mul_i32 s26, s10, 14
s_add_u32 s25, s25, s26
s_lshl_b32 s25, s25, 11
s_add_u32 s25, s25, {WS_WD}
s_mul_i32 s27, s20, 224
s_add_u32 s27, s27, s26
s_lshl_b32 s27, s27, 10
s_add_u32 s27, s27, {WS_HH}
s_waitcnt lgkmcnt(0)
s_add_u32 s12, s6, s25
s_addc_u32 s13, s7, 0
s_mov_b32 s14, {28*1024}
s_mov_b32 s15, 0x20000
s_add_u32 s16, s6, s27
s_addc_u32 s17, s7, 0
s_mov_b32 s18, {(112+14)*1024}
s_mov_b32 s19, 0x20000""")
    WD = 144; ACC = 16; HB = 80
    seq = [(f, si) for f in range(14) for si in range(2)]
    NR = 16
    def ldh(idx):
        f, si = seq[idx]
        off = si*112*1024 + f*1024
        k(f"s_mov_b32 s28, {off & ~4095}\nbuffer_load_dwordx4 v[{HB+4*(idx%NR)}:{HB+4*(idx%NR)+3}], v3, s[16:19], s28 offen offset:{off & 4095}")
    nissued = 0
    for f in range(14):
        for ct in range(2):
            off = (f*2+ct)*1024
            k(f"s_mov_b32 s28, {off & ~4095}\nbuffer_load_dwordx4 v[{WD+8*f+4*ct}:{WD+8*f+4*ct+3}], v3, s[12:15], s28 offen offset:{off & 4095}")
        if f < 8:
            ldh(2*f); ldh(2*f+1)
    order = []
    for f in range(14):
        order += [("w", f, 0), ("w", f, 1)]
        if f < 8: order += [("h", 2*f), ("h", 2*f+1)]
    for idx, (f, si) in enumerate(seq):
        need_pos = max(order.index(("w", f, 1)), order.index(("h", idx)))
        k(f"s_waitcnt vmcnt({len(order)-1-need_pos})")
        hb = HB + 4*(idx % NR)
        for ct in range(2):
            a = ACC + 16*(si*2+ct)
            cc = "0" if f == 0 else f"v[{a}:{a+15}]"
            k(f"v_mfma_f32_32x32x16_bf16 v[{a}:{a+15}], v[{hb}:{hb+3}], v[{WD+8*f+4*ct}:{WD+8*f+4*ct+3}], {cc}")
        if idx + NR < len(seq):
            ldh(idx + NR); order.append(("h", idx+NR))
    p5_reduce_epilogue(k, ACC)
```

```python
from common import *
LP_GU = 0
LP_WD = 18688
LP_WF = 18688 + 9216
LP_END = LP_WF + 2*4128
def prep_issue(k, R0=16, sc=""):
    k(f"""s_load_dwordx2 s[40:41], s[0:1], {KARG['wg']}
s_load_dwordx2 s[42:43], s[0:1], {KARG['wu']}
s_load_dwordx2 s[44:45], s[0:1], {KARG['wd']}
s_load_dwordx2 s[48:49], s[0:1], {KARG['wr']}
s_load_dwordx2 s[52:53], s[0:1], {KARG['wi']}""")
    A = R0 + 20
    k(f"""s_min_u32 s56, s2, 223
s_lshr_b32 s57, s56, 4
s_and_b32 s58, s56, 15
s_mul_i32 s58, s58, {32*3584}
s_lshl_b32 s57, s57, 8
s_add_u32 s58, s58, s57
v_lshrrev_b32 v{A}, 4, v0
v_mul_u32_u24 v{A}, 3584, v{A}
v_and_b32 v{A+1}, 15, v0
v_lshlrev_b32 v{A+1}, 4, v{A+1}
v_add_u32 v{A}, v{A}, v{A+1}
v_add_u32 v{A}, s58, v{A}""")
    k(f"""s_lshr_b32 s57, s56, 1
s_lshl_b32 s57, s57, 14
s_and_b32 s58, s56, 1
s_lshl_b32 s58, s58, 9
s_add_u32 s57, s57, s58
v_lshrrev_b32 v{A+1}, 5, v0
v_lshlrev_b32 v{A+1}, 10, v{A+1}
v_and_b32 v{A+2}, 31, v0
v_lshlrev_b32 v{A+2}, 4, v{A+2}
v_add_u32 v{A+1}, v{A+1}, v{A+2}
v_add_u32 v{A+1}, s57, v{A+1}""")
    k(f"""s_mul_i32 s57, s2, 4112
v_lshlrev_b32 v{A+2}, 4, v0
v_add_u32 v{A+2}, s57, v{A+2}
s_waitcnt lgkmcnt(0)
s_mov_b32 s50, {2048*514}
s_mov_b32 s51, 0x20000
s_mov_b32 s54, {2048*514}
s_mov_b32 s55, 0x20000""")
    k(f"buffer_load_dwordx4 v[{R0+12}:{R0+15}], v{A+2}, s[48:51], 0 offen")
    k(f"buffer_load_dwordx4 v[{R0+16}:{R0+19}], v{A+2}, s[52:55], 0 offen")
    k(f"global_load_dwordx4 v[{R0}:{R0+3}], v{A}, s[40:41]")
    k(f"global_load_dwordx4 v[{R0+4}:{R0+7}], v{A}, s[42:43]")
    k(f"global_load_dwordx4 v[{R0+8}:{R0+11}], v{A+1}, s[44:45]")
def prep_lds_write(k, R0=16, base=0):
    A = R0 + 20
    k(f"""v_lshrrev_b32 v{A}, 4, v0
v_mul_u32_u24 v{A}, 288, v{A}
v_and_b32 v{A+1}, 15, v0
v_lshlrev_b32 v{A+1}, 4, v{A+1}
v_add_u32 v{A}, v{A}, v{A+1}
v_lshrrev_b32 v{A+1}, 5, v0
v_mul_u32_u24 v{A+1}, 576, v{A+1}
v_and_b32 v{A+2}, 31, v0
v_lshlrev_b32 v{A+2}, 4, v{A+2}
v_add_u32 v{A+1}, v{A+1}, v{A+2}
v_lshlrev_b32 v{A+2}, 4, v0
ds_write_b128 v{A}, v[{R0}:{R0+3}] offset:{base+LP_GU}
ds_write_b128 v{A}, v[{R0+4}:{R0+7}] offset:{base+LP_GU+9344}
ds_write_b128 v{A+1}, v[{R0+8}:{R0+11}] offset:{base+LP_WD}
v_cmp_gt_u32 vcc, 257, v0
s_and_saveexec_b64 s[56:57], vcc
ds_write_b128 v{A+2}, v[{R0+12}:{R0+15}] offset:{base+LP_WF}
ds_write_b128 v{A+2}, v[{R0+16}:{R0+19}] offset:{base+LP_WF+4128}
s_mov_b64 exec, s[56:57]""")
def prep_out(k, ws, R0=16, base=0, sc="", name="prep"):
    A = R0 + 20
    k(f"""v_and_b32 v{A}, 63, v0
v_lshrrev_b32 v{A+1}, 6, v0
v_readfirstlane_b32 s56, v{A+1}
v_lshrrev_b32 v{A+1}, 4, v{A}
v_bfe_u32 v{A+2}, v{A}, 2, 2
v_and_b32 v{A+3}, 3, v{A}""")
    k(f"""v_and_b32 v{R0}, 1, v{A+1}
v_mul_u32_u24 v{R0}, 9344, v{R0}
v_lshrrev_b32 v{R0+1}, 1, v{A+1}
v_lshlrev_b32 v{R0+1}, 2, v{R0+1}
v_add_u32 v{R0+1}, v{R0+1}, v{A+2}
v_mul_u32_u24 v{R0+2}, 288, v{R0+1}
v_add_u32 v{R0}, v{R0}, v{R0+2}
v_lshlrev_b32 v{R0+2}, 3, v{A+3}
v_add_u32 v{R0}, v{R0}, v{R0+2}
s_lshl_b32 s57, s56, 5
v_add_u32 v{R0}, s57, v{R0}""")
    k(f"""v_mul_u32_u24 v{R0+1}, 576, v{R0+1}
v_add_u32 v{R0+1}, v{R0+1}, v{R0+2}
v_and_b32 v{R0+2}, 1, v{A+1}
v_lshlrev_b32 v{R0+2}, 5, v{R0+2}
v_add_u32 v{R0+1}, v{R0+1}, v{R0+2}
s_lshl_b32 s57, s56, 6
v_add_u32 v{R0+1}, s57, v{R0+1}""")
    D = R0 + 4
    for tb in range(2):
        for jh in range(2):
            k(f"ds_read_b64_tr_b16 v[{D+4*tb+2*jh}:{D+4*tb+2*jh+1}], v{R0} offset:{base+LP_GU+tb*8*288+jh*16*288}")
    for jh in range(2):
        k(f"ds_read_b64_tr_b16 v[{D+8+2*jh}:{D+8+2*jh+1}], v{R0+1} offset:{base+LP_WD+jh*8*576}")
    k(f"""v_lshrrev_b32 v{R0+2}, 1, v0
v_and_b32 v{R0+3}, 1, v0
v_mul_u32_u24 v{A+1}, {4*514}, v{R0+3}
v_lshlrev_b32 v{A+2}, 1, v{R0+2}
v_add_u32 v{A+1}, v{A+1}, v{A+2}""")
    F = R0 + 24
    for i in range(4):
        k(f"ds_read_u16 v{F+i}, v{A+1} offset:{base+LP_WF+i*514}")
        k(f"ds_read_u16 v{F+4+i}, v{A+1} offset:{base+LP_WF+4128+i*514}")
    k(f"v_mul_u32_u24 v{A+2}, {4*514}, v0\nv_min_u32 v{A+2}, {4*514}, v{A+2}")
    for i in range(4):
        k(f"ds_read_u16 v{F+8+i}, v{A+2} offset:{base+LP_WF+512+i*514}")
        k(f"ds_read_u16 v{F+12+i}, v{A+2} offset:{base+LP_WF+4128+512+i*514}")
    k(f"""s_min_u32 s57, s2, 223
s_lshr_b32 s58, s57, 4
s_and_b32 s59, s57, 15
s_lshl_b32 s58, s58, 3
s_add_u32 s58, s58, s56
s_lshl_b32 s58, s58, 5
s_lshl_b32 s59, s59, 1
s_add_u32 s58, s58, s59
s_lshl_b32 s58, s58, 10
s_add_u32 s58, s58, {WS_WGU}
v_lshlrev_b32 v{A}, 4, v{A}
v_add_u32 v{R0}, s58, v{A}""")
    k(f"""s_and_b32 s58, s57, 1
s_lshl_b32 s58, s58, 2
s_lshr_b32 s59, s56, 1
s_add_u32 s58, s58, s59
s_mul_i32 s58, s58, 112
s_lshr_b32 s59, s57, 1
s_add_u32 s58, s58, s59
s_lshl_b32 s58, s58, 1
s_and_b32 s59, s56, 1
s_add_u32 s58, s58, s59
s_lshl_b32 s58, s58, 10
s_add_u32 s58, s58, {WS_WD}
v_add_u32 v{R0+1}, s58, v{A}""")
    k(f"""s_lshl_b32 s58, s2, 5
s_add_u32 s58, s58, {WS_WT}
v_lshlrev_b32 v{R0+2}, 13, v{R0+2}
v_lshlrev_b32 v{R0+3}, 4, v{R0+3}
v_add_u32 v{R0+2}, v{R0+2}, v{R0+3}
v_add_u32 v{R0+2}, s58, v{R0+2}
v_lshlrev_b32 v{R0+3}, 4, v0
v_add_u32 v{R0+3}, s58, v{R0+3}
v_add_u32 v{R0+3}, {256*8192}, v{R0+3}""")
    k("s_waitcnt lgkmcnt(0)")
    lab = k.label("skip")
    k(f"s_cmp_ge_u32 s2, 224\ns_cbranch_scc1 {lab}")
    k(f"global_store_dwordx4 v{R0}, v[{D}:{D+3}], s[{ws}:{ws+1}] {sc}")
    k(f"global_store_dwordx4 v{R0}, v[{D+4}:{D+7}], s[{ws}:{ws+1}] offset:1024 {sc}")
    k(f"global_store_dwordx4 v{R0+1}, v[{D+8}:{D+11}], s[{ws}:{ws+1}] {sc}")
    k(f"{lab}:")
    for i in range(4):
        k(f"v_lshl_or_b32 v{F+i}, v{F+4+i}, 16, v{F+i}")
    for i in range(4):
        k(f"v_lshl_or_b32 v{F+8+i}, v{F+12+i}, 16, v{F+8+i}")
    k(f"global_store_dwordx4 v{R0+2}, v[{F}:{F+3}], s[{ws}:{ws+1}] {sc}")
    k(f"""v_cmp_gt_u32 vcc, 2, v0
s_and_saveexec_b64 s[58:59], vcc
global_store_dwordx4 v{R0+3}, v[{F+8}:{F+11}], s[{ws}:{ws+1}] {sc}
s_mov_b64 exec, s[58:59]""")
def gen_prep(k):
    k(f"s_load_dwordx2 s[6:7], s[0:1], {KARG['ws']}")
    prep_issue(k)
    k("s_waitcnt vmcnt(0)")
    prep_lds_write(k)
    k("s_waitcnt lgkmcnt(0)\ns_barrier")
    prep_out(k, 6)
```

```python
import sys
from common import *
import p1, p2, p3, p4, p5, mod, prep
ks = []
def wrap(name, grid, gen, **kw):
    k = K(name, grid, **kw); ks.append(k)
    k(f"s_cmp_ge_u32 s2, {grid}\ns_cbranch_scc1 L_{name}_end"); gen(k); k(f"L_{name}_end:\ns_endpgm")
wrap("k0_kernel", 96, mod.gen_mod, block=512, lds=mod.LDS_MOD, nv=96)
wrap("prep_kernel", 256, prep.gen_prep, block=512, lds=prep.LP_END, nv=64)
wrap("p1_kernel", 256, p1.gen_p1, block=512, lds=10240+8*328*4, nv=128)
wrap("p2_kernel", 257, p2.gen_p2, block=256, lds=32*272, nv=192)
wrap("p3_kernel", 256, p3.gen_p3, block=512, lds=p3.LDS_P3, nv=128)
wrap("p4_kernel", 224, p4.gen_p4, block=512, lds=p4.LDS_P4, nv=256)
wrap("p5_kernel", 256, p5.gen_p5, block=512, lds=p5.LDS_P5, nv=256)
tabs = ".text\n" + table_asm("tab_p1", p1.p1_tables())
hdr = open('adaLN_cond__spectral_gfnet__glu_gated_bilinear__prompt.s.ref').read().split("; Override launch")[0]
open(sys.argv[1], "w").write(emit(ks, header=hdr, tables=tabs))
for k in ks: print(k.name, "nops inserted", k.inserted)
```

```python
import re
NAME = "adaLN_cond__spectral_gfnet__glu_gated_bilinear__prompt"
KARG = dict(x=0, wr=8, wi=16, bx=24, wg=32, wu=40, wd=48, c=56, wmod=64, out=72, dbg=80, ws=88)
TRANS = ("v_exp_", "v_log_", "v_rcp_", "v_rsq_", "v_sqrt_", "v_sin_", "v_cos_")

def regs_of(tok):
    tok = tok.strip()
    tok = re.sub(r"^(neg|abs)\((.*)\)$", r"\2", tok)
    tok = tok.lstrip("-").strip("|")
    m = re.fullmatch(r"([vas])\[(\d+):(\d+)\]", tok)
    if m: return {(m.group(1), i) for i in range(int(m.group(2)), int(m.group(3)) + 1)}
    m = re.fullmatch(r"([vas])(\d+)", tok)
    if m: return {(m.group(1), int(m.group(2)))}
    if tok == "vcc": return {("s", "vcc_lo"), ("s", "vcc_hi")}
    if tok in ("vcc_lo", "vcc_hi"): return {("s", tok)}
    if tok == "exec": return {("s", "exec_lo"), ("s", "exec_hi")}
    if tok in ("exec_lo", "exec_hi"): return {("s", tok)}
    if tok == "m0": return {("s", "m0")}
    return set()

def split_ops(line):
    parts = line.split(None, 1)
    op = parts[0]
    rest = parts[1] if len(parts) > 1 else ""
    ops = []; cur = ""; depth = 0
    for ch in rest:
        if ch in "[(": depth += 1
        if ch in "])": depth -= 1
        if ch == "," and depth == 0:
            ops.append(cur.strip()); cur = ""
        else: cur += ch
    if cur.strip(): ops.append(cur.strip())
    mods = ""
    if ops:
        sp = ops[-1].split(None, 1)
        ops[-1] = sp[0]
        if len(sp) > 1: mods = sp[1]
    return op, ops, mods

class Ins:
    pass

def classify(line):
    op, ops, mods = split_ops(line)
    I = Ins(); I.op = op; I.kind = "other"; I.wr = set(); I.rd = set(); I.states = 1
    I.dpp = ("row_" in mods or "quad_perm" in mods or "wave_" in mods or "row_" in line or "quad_perm" in line)
    I.passes = 0; I.C = set(); I.AB = set(); I.D = set(); I.store_data = set(); I.wide_store = False
    R = [regs_of(o) for o in ops]
    if op == "s_nop":
        I.kind = "nop"; I.states = int(ops[0]) + 1
    elif op.startswith("v_mfma"):
        I.kind = "mfma"; I.passes = 8 if "32x32" in op else 4
        I.D = R[0]; I.AB = R[1] | R[2]; I.C = R[3]; I.wr = R[0]; I.rd = R[1] | R[2] | R[3]
        I.shape = op
    elif op.startswith("v_"):
        I.kind = "valu"
        I.trans = op.startswith(TRANS)
        nd = 1
        if op.startswith(("v_add_co", "v_sub_co", "v_addc_co", "v_subb_co", "v_subrev_co", "v_mad_u64", "v_div_scale")): nd = 2
        if op.startswith(("v_permlane16_swap", "v_permlane32_swap", "v_swap")):
            I.wr = R[0] | R[1]; I.rd = R[0] | R[1]
        else:
            for r in R[:nd]: I.wr |= r
            for r in R[nd:]: I.rd |= r
            if op.startswith(("v_fmac", "v_mac", "v_pk_fmac", "v_dot2c", "v_writelane")) : I.rd |= R[0]
            if I.dpp: I.rd |= R[0]
        if op.startswith("v_cndmask") and len(ops) == 3: I.rd |= regs_of("vcc")
        if op.startswith(("v_addc_co","v_subb_co")) and len(ops) == 4: I.rd |= regs_of("vcc")
        if op.startswith("v_cmpx"): I.wr |= regs_of("exec")
        I.lane = op.startswith(("v_readlane", "v_readfirstlane", "v_writelane"))
        I.perm = op.startswith("v_permlane")
        I.dot = op.startswith("v_dot")
    elif op.startswith(("buffer_", "global_", "flat_")):
        I.kind = "vmem"
        islds = (" lds" in (" " + mods)) or "_lds_" in op
        if "load" in op and not islds:
            I.wr = R[0]
            for r in R[1:]: I.rd |= r
        elif "atomic" in op:
            for r in R: I.rd |= r
            if "sc0" in mods: I.wr = R[0]
        elif op.startswith(("buffer_wbl2","buffer_inv")):
            pass
        else:
            for r in R: I.rd |= r
            if islds: I.rd |= regs_of("m0")
            if "store" in op:
                data = R[0] if op.startswith("buffer_") else R[1]
                I.store_data = data
                I.wide_store = ("x3" in op or "x4" in op)
    elif op.startswith("ds_"):
        I.kind = "ds"
        if op.startswith(("ds_read", "ds_bpermute", "ds_permute", "ds_swizzle")) :
            I.wr = R[0]
            for r in R[1:]: I.rd |= r
        else:
            for r in R: I.rd |= r
    elif op.startswith("s_"):
        I.kind = "salu"
        if op.startswith(("s_cmp", "s_cbranch", "s_branch", "s_waitcnt", "s_barrier", "s_endpgm", "s_sleep", "s_setprio", "s_bitcmp")):
            for r in R: I.rd |= r
        else:
            if R: I.wr = R[0]
            for r in R[1:]: I.rd |= r
            if "saveexec" in op: I.wr |= regs_of("exec")
    return I

def need(prev, cur):
    n = 0
    isv = lambda S: {r for r in S if r[0] in "va"}
    iss = lambda S: {r for r in S if r[0] == "s"}
    if prev.kind == "valu":
        pw = isv(prev.wr); ps = iss(prev.wr)
        if cur.kind == "mfma" and pw & cur.rd: n = max(n, 2)
        if cur.kind == "mfma" and ("s","exec_lo") in ps: n = max(n, 4)
        if cur.kind == "valu":
            if cur.dpp and pw & cur.rd: n = max(n, 2)
            if cur.dpp and ("s","exec_lo") in ps: n = max(n, 5)
            if prev.trans and pw & (cur.rd | cur.wr): n = max(n, 1)
            if cur.lane and pw & cur.rd: n = max(n, 1)
            if cur.perm and pw & cur.rd: n = max(n, 2)
            if ps & cur.rd: n = max(n, 4 if cur.lane else 2)
            if prev.dot and pw & (cur.rd | cur.wr):
                same = (prev.op == cur.op and (pw & cur.rd) == pw and len(cur.rd & pw) == len(pw) and cur.wr == pw)
                n = max(n, 0 if same else 3)
        if cur.kind in ("vmem",) and ps & cur.rd: n = max(n, 5)
        if cur.kind in ("vmem", "ds") and prev.trans and pw & cur.rd: n = max(n, 1)
        if cur.kind in ("vmem", "ds") and prev.dot and pw & cur.rd: n = max(n, 3)
        if cur.kind == "salu" and ps & cur.rd: n = max(n, 1)
    if prev.kind == "mfma":
        p8 = prev.passes == 8
        if cur.kind == "mfma":
            if prev.D & cur.AB: n = max(n, 12 if p8 else 8)
            if prev.D & cur.C:
                if not (prev.D == cur.C and prev.passes == cur.passes): n = max(n, 10 if p8 else 6)
            elif prev.D & cur.D: n = max(n, 10 if p8 else 6)
        elif cur.kind in ("valu", "vmem", "ds"):
            if prev.D & (cur.rd | cur.wr): n = max(n, 12 if p8 else 8)
            if cur.kind == "valu" and prev.C & cur.wr: n = max(n, 7 if p8 else 3)
            if cur.kind in ("vmem","ds") and prev.C & cur.wr: n = max(n, 7 if p8 else 3)
    if prev.kind == "vmem" and prev.wide_store:
        if cur.kind == "valu" and prev.store_data & cur.wr: n = max(n, 2)
        elif prev.store_data & cur.wr: n = max(n, 1)
    if prev.kind == "salu" and ("s", "m0") in prev.wr and cur.kind == "vmem" and ("s","m0") in cur.rd: n = max(n, 1)
    return n

def hazard_fix(lines):
    out = []; hist = []
    pos = 0; inserted = 0
    for l in lines:
        if l.endswith(":") or l.startswith((".", ";")):
            out.append(l); continue
        code = l.split(";")[0].strip()
        I = classify(code)
        req = 0
        for (P, ppos) in hist:
            d = pos - ppos - 1
            nn = need(P, I)
            if nn > d: req = max(req, nn - d)
        while req > 0:
            k = min(req, 16)
            out.append(f"s_nop {k-1}"); pos += k; req -= k; inserted += k
        out.append(l)
        hist.append((I, pos + I.states - 1 if I.kind == "nop" else pos))
        pos += I.states
        hist = [(P, pp) for (P, pp) in hist if pos - pp < 24]
    return out, inserted

class K:
    def __init__(self, name, grid, block=256, lds=0, nv=64, ns=96, acc=None):
        self.name = name; self.grid = grid; self.block = block; self.lds = lds
        self.nv = nv; self.ns = ns; self.acc = acc
        self.lines = []; self.uid = 0; self.tail = []
    def __call__(self, s):
        for l in s.split("\n"):
            l = l.strip()
            if l: self.lines.append(l)
    def stamp(self, i):
        if getattr(self, "trace", False):
            self(f"s_memrealtime s[98:99]\ns_waitcnt lgkmcnt(0)\ns_mov_b32 s{70+i}, s98")
            self.nstamps = max(getattr(self, "nstamps", 0), i+1)
    def label(self, base):
        self.uid += 1
        return f"L_{self.name}_{base}_{self.uid}"
    def text(self):
        lines, ins = hazard_fix(self.lines)
        self.inserted = ins
        body = "\n".join(("" if l.endswith(":") else "    ") + l for l in lines)
        acc = self.acc if self.acc is not None else (self.nv + 3)//4*4
        tail = "\n".join(self.tail)
        return f"""
.text
.globl {self.name}
.p2align 8
.type {self.name},@function
{self.name}:
{body}
{tail}
.section .rodata,"a"
.p2align 6
.amdhsa_kernel {self.name}
  .amdhsa_next_free_vgpr {self.nv}
  .amdhsa_next_free_sgpr {self.ns}
  .amdhsa_accum_offset {acc}
  .amdhsa_group_segment_fixed_size 0
  .amdhsa_kernarg_size 96
  .amdhsa_user_sgpr_count 2
  .amdhsa_user_sgpr_kernarg_segment_ptr 1
  .amdhsa_system_sgpr_workgroup_id_x 1
  .amdhsa_float_denorm_mode_32 3
.end_amdhsa_kernel
"""
def emit(kernels, header="", tables=""):
    out = header
    for k in kernels:
        out += f"; @launch kernel={k.name} grid=({k.grid},1,1) block=({k.block},1,1) lds={k.lds}\n"
    out += '.amdgcn_target "amdgcn-amd-amdhsa--gfx950"\n'
    for k in kernels:
        out += k.text()
    out += tables
    return out
```

```python
import numpy as np
from asmlib import *
WS_MOD  = 0x000000
WS_T    = 0x004000
WS_MODG = 0x005000
WS_FLA  = 0x010000
WS_FLB  = 0x020000
WS_Z1   = 0x100000
WS_Z2   = 0x400000
WS_WT   = 0x700000
WS_X2   = 0xA00000
WS_H2   = 0xC00000
WS_WD   = 0x1400000
WS_HH   = 0x1800000
WS_TRACE = 0x2000000
ZS = 8320
L_BIG = 0
L_SM = 131072
LDS_TOTAL = 163840
def rbf_u16(x):
    x = np.ascontiguousarray(x, dtype=np.float32)
    u = x.view(np.uint32)
    return (((u + 0x7FFF + ((u >> 16) & 1)) >> 16) & 0xFFFF).astype(np.uint32)
def pk(lo, hi):
    return (rbf_u16(np.float32(lo)) | (rbf_u16(np.float32(hi)) << 16)).astype(np.uint32)
def f32u(x):
    return np.ascontiguousarray(x, dtype=np.float32).view(np.uint32)
def cosr(num, den):
    num = np.asarray(num) % den
    c = np.cos(2*np.pi*num/den)
    c[np.isclose(c, 0, atol=1e-12)] = 0.0
    return c
def sinr(num, den):
    num = np.asarray(num) % den
    s = np.sin(2*np.pi*num/den)
    s[np.isclose(s, 0, atol=1e-12)] = 0.0
    return s
L = np.arange(64); LI = L & 15; LQ = L >> 4
def table_asm(name, regs):
    assert len(regs) % 4 == 0
    out = f"\n.p2align 8\n.type {name},@object\n{name}:\n"
    for i in range(0, len(regs), 4):
        blk = np.stack(regs[i:i+4], axis=1).reshape(-1)
        for j in range(0, len(blk), 8):
            out += ".long " + ",".join(f"0x{int(v):08x}" for v in blk[j:j+8]) + "\n"
    out += f".size {name}, {len(regs)*256}\n"
    return out
def getpc(k, sreg, sym, extra=0):
    lab = k.label("pc")
    k(f"s_getpc_b64 s[{sreg}:{sreg+1}]\n{lab}:\ns_add_u32 s{sreg}, s{sreg}, {sym}-{lab}+{extra}\ns_addc_u32 s{sreg+1}, s{sreg+1}, 0")
def addbase(k, d, b, off):
    k(f"s_add_u32 s{d}, s{b}, {off}\ns_addc_u32 s{d+1}, s{b+1}, 0")
def srd(k, d, b, nbytes):
    k(f"s_mov_b32 s{d}, s{b}\ns_mov_b32 s{d+1}, s{b+1}\ns_mov_b32 s{d+2}, {nbytes}\ns_mov_b32 s{d+3}, 0x20000")
def reduce64_pair(k, a, b):
    for sh in (1, 2, 4, 8):
        k(f"v_add_f32_dpp v{a}, v{a}, v{a} row_shr:{sh} row_mask:0xf bank_mask:0xf bound_ctrl:0")
        k(f"v_add_f32_dpp v{b}, v{b}, v{b} row_shr:{sh} row_mask:0xf bank_mask:0xf bound_ctrl:0")
    k(f"v_add_f32_dpp v{a}, v{a}, v{a} row_bcast:15 row_mask:0xa bank_mask:0xf")
    k(f"v_add_f32_dpp v{b}, v{b}, v{b} row_bcast:15 row_mask:0xa bank_mask:0xf")
    k(f"v_add_f32_dpp v{a}, v{a}, v{a} row_bcast:31 row_mask:0xc bank_mask:0xf")
    k(f"v_add_f32_dpp v{b}, v{b}, v{b} row_bcast:31 row_mask:0xc bank_mask:0xf")
def gen_t64(k, vt, vlane, tmp):
    k(f"""v_cvt_f32_u32 v{tmp}, v{vlane}
v_mul_f32 v{tmp}, 0x3c800000, v{tmp}
v_cos_f32 v{tmp+1}, v{tmp}
v_sin_f32 v{tmp}, v{tmp}
v_cvt_pk_bf16_f32 v{vt}, v{tmp+1}, v{tmp}""")
def derive_m2(k, dst, src, n, smask):
    for i in range(n):
        k(f"v_alignbit_b32 v{dst+i}, v{src+i}, v{src+i}, 16")
    for i in range(n):
        k(f"v_xor_b32 v{dst+i}, s{smask}, v{dst+i}")
def cmul_tw(k, dre, dim, re, im, c, s, n):
    for o in range(0, n, 2):
        k(f"v_pk_mul_f32 v[{dre+o}:{dre+o+1}], v[{re+o}:{re+o+1}], v[{c+o}:{c+o+1}]")
        k(f"v_pk_mul_f32 v[{dim+o}:{dim+o+1}], v[{im+o}:{im+o+1}], v[{c+o}:{c+o+1}]")
    for o in range(0, n, 2):
        k(f"v_pk_fma_f32 v[{dre+o}:{dre+o+1}], v[{im+o}:{im+o+1}], v[{s+o}:{s+o+1}], v[{dre+o}:{dre+o+1}]")
        k(f"v_pk_fma_f32 v[{dim+o}:{dim+o+1}], v[{re+o}:{re+o+1}], v[{s+o}:{s+o+1}], v[{dim+o}:{dim+o+1}] neg_lo:[1,0,0] neg_hi:[1,0,0]")
SPIN_CAP = 60000
def spin_begin(k, name):
    lab = k.label(name)
    k(f"s_mov_b32 s97, 0\n{lab}:")
    return lab
def spin_end(k, lab, sleep=0):
    out = lab + "_x"
    k(f"s_cbranch_vccz {out}")
    k(f"s_add_u32 s97, s97, 1\ns_cmp_lt_u32 s97, s96")
    if sleep: k(f"s_sleep {sleep}")
    k(f"s_cbranch_scc1 {lab}\ns_mov_b32 s96, 0\n{out}:")
```

```python
from common import *
S_WD = 0
S_WF = 9216
S_MODR = 17920
S_MODS = 21504
def prologue(k):
    K_ = KARG
    k(f"""s_load_dwordx2 s[4:5], s[0:1], {K_['x']}
s_load_dwordx2 s[6:7], s[0:1], {K_['ws']}
s_load_dwordx2 s[8:9], s[0:1], {K_['out']}
s_load_dwordx2 s[48:49], s[0:1], {K_['wr']}
s_load_dwordx2 s[52:53], s[0:1], {K_['wi']}
s_load_dwordx2 s[44:45], s[0:1], {K_['wd']}
s_load_dwordx2 s[56:57], s[0:1], {K_['wg']}
s_load_dwordx2 s[60:61], s[0:1], {K_['wu']}
s_load_dwordx2 s[64:65], s[0:1], {K_['c']}
s_load_dwordx2 s[66:67], s[0:1], {K_['wmod']}""")
    k(f"""v_and_b32 v1, 63, v0
v_lshrrev_b32 v2, 6, v0
v_lshlrev_b32 v3, 4, v1
v_readfirstlane_b32 s10, v2
s_and_b32 s11, s2, 31
s_lshr_b32 s12, s2, 5
s_mov_b32 s96, {SPIN_CAP}
s_and_b32 s13, s2, 7
s_lshr_b32 s14, s2, 3
s_lshl_b32 s34, s13, 5
s_add_u32 s34, s34, s14
s_lshl_b32 s38, s13, 2
s_and_b32 s15, s14, 3
s_add_u32 s38, s38, s15
s_lshr_b32 s39, s14, 2
s_sub_u32 s14, s14, 4
s_lshr_b32 s36, s13, 1
s_lshl_b32 s36, s36, 2
s_and_b32 s15, s14, 3
s_add_u32 s36, s36, s15
s_and_b32 s37, s13, 1
s_mul_i32 s37, s37, 7
s_lshr_b32 s15, s14, 2
s_add_u32 s37, s37, s15""")
    k("""s_lshl_b32 s13, s12, 3
s_add_u32 s13, s13, s10
s_lshl_b32 s13, s13, 5
s_add_u32 s13, s13, s11
s_lshl_b32 s13, s13, 10
v_add_u32 v4, s13, v3
v_add_u32 v5, 4096, v3
v_lshlrev_b32 v6, 4, v0""")
    getpc(k, 14, "tab_p1", 4096)
    k("""s_mul_i32 s16, s2, 4112
v_min_u32 v7, 256, v0
v_lshlrev_b32 v7, 4, v7
v_add_u32 v7, s16, v7""")
    k(f"""s_mov_b32 s50, {2048*514}
s_mov_b32 s51, 0x20000
s_mov_b32 s54, {2048*514}
s_mov_b32 s55, 0x20000
s_mov_b32 s58, {512*3584}
s_mov_b32 s59, 0x20000
s_mov_b32 s62, {512*3584}
s_mov_b32 s63, 0x20000
s_waitcnt lgkmcnt(0)
s_load_dword s3, s[6:7], {WS_T}""")
def load_x_filter_table(k):
    k("global_load_dwordx4 v[8:11], v4, s[4:5]")
    k("buffer_load_dwordx4 v[96:99], v7, s[48:51], 0 offen\nbuffer_load_dwordx4 v[100:103], v7, s[52:55], 0 offen")
def load_table(k):
    T = 40
    for i in range(8):
        k(f"global_load_dwordx4 v[{T+4*i}:{T+4*i+3}], v3, s[14:15] offset:{(i-4)*1024}")
    k(f"global_load_dwordx4 v[{T+32}:{T+35}], v5, s[14:15] offset:0")
def clear_regs(k):
    k("v_mov_b32 v108, -1\nv_mov_b32 v109, -1\nv_mov_b32 v110, -1\nv_mov_b32 v111, -1")
def clear_small(k):
    lab = k.label("cs")
    k(f"""s_cmp_lg_u32 s10, 0
s_cbranch_scc1 {lab}
s_mul_i32 s16, s2, {ZS}
s_add_u32 s16, s16, {WS_Z1 + 8192}
v_add_u32 v112, s16, v3
s_mov_b64 exec, 3
global_store_dwordx4 v112, v[108:111], s[6:7] sc1
s_mov_b64 exec, -1
{lab}:""")
    lab = k.label("cs")
    k(f"""s_cmp_lg_u32 s2, 0
s_cbranch_scc1 {lab}
v_add_u32 v112, {WS_Z2 + 256*8192}, v6
global_store_dwordx4 v112, v[108:111], s[6:7] sc1
{lab}:""")
def clear_A(k):
    k(f"""s_mul_i32 s16, s2, {ZS}
s_add_u32 s16, s16, {WS_Z1}
v_add_u32 v112, s16, v6
global_store_dwordx4 v112, v[108:111], s[6:7] sc1
s_lshl_b32 s16, s34, 13
s_add_u32 s16, s16, {WS_Z2}
v_add_u32 v113, s16, v6
global_store_dwordx4 v113, v[108:111], s[6:7] sc1""")
def x2_addr(k, dst, tid=0):
    k(f"""s_lshl_b32 s16, s11, 6
s_lshl_b32 s17, s12, 3
s_add_u32 s16, s16, s17
s_lshl_b32 s16, s16, 10
s_add_u32 s16, s16, {WS_X2}
v_lshlrev_b32 v{dst}, 4, v{tid}
v_add_u32 v{dst}, s16, v{dst}""")
def h2_addr(k, dst, tmp, tid=0):
    k(f"""s_lshr_b32 s16, s11, 1
s_lshl_b32 s16, s16, 17
s_and_b32 s17, s11, 1
s_lshl_b32 s17, s17, 1
s_lshr_b32 s18, s12, 2
s_add_u32 s17, s17, s18
s_lshl_b32 s17, s17, 15
s_add_u32 s16, s16, s17
s_and_b32 s18, s12, 3
s_lshl_b32 s18, s18, 7
s_add_u32 s16, s16, s18
s_add_u32 s16, s16, {WS_H2}
v_lshrrev_b32 v{dst}, 3, v{tid}
v_lshlrev_b32 v{dst}, 9, v{dst}
v_and_b32 v{tmp}, 7, v{tid}
v_lshlrev_b32 v{tmp}, 4, v{tmp}
v_add_u32 v{dst}, v{dst}, v{tmp}
v_add_u32 v{dst}, s16, v{dst}""")
def clear_xh(k, data=108, a=112):
    x2_addr(k, a)
    k(f"global_store_dwordx4 v{a}, v[{data}:{data+3}], s[6:7] sc1")
    h2_addr(k, a+1, a+2)
    k(f"global_store_dwordx4 v{a+1}, v[{data}:{data+3}], s[6:7] sc1")
def wdma_addr(k, a0):
    k(f"""v_lshrrev_b32 v{a0+2}, 4, v1
v_mul_u32_u24 v{a0}, 3584, v{a0+2}
v_lshlrev_b32 v{a0+2}, 1, v{a0+2}
v_and_b32 v{a0+1}, 15, v1
v_xor_b32 v{a0+2}, v{a0+2}, v{a0+1}
v_lshlrev_b32 v{a0+2}, 4, v{a0+2}
v_xor_b32 v{a0+1}, 128, v{a0+2}
v_add_u32 v{a0+1}, v{a0}, v{a0+1}
v_add_u32 v{a0}, v{a0}, v{a0+2}""")
def wdma(k, a0, krow0, lrow0, nrows, wsel, nw):
    ng = nrows // 4
    assert ng % nw == 0 and nw % 2 == 0
    k(f"""s_mul_i32 s16, s{wsel}, {4*3584}
s_lshl_b32 s17, s37, 8
s_add_u32 s16, s16, s17
s_add_u32 s16, s16, {krow0*3584}
s_lshl_b32 s17, s{wsel}, 10
s_add_u32 s17, s17, {L_BIG + lrow0*256}
s_and_b32 s18, s{wsel}, 1
s_cmp_eq_u32 s18, 1
s_cselect_b64 vcc, -1, 0
v_cndmask_b32 v{a0+2}, v{a0}, v{a0+1}, vcc
v_cndmask_b32 v{a0+3}, v{a0+1}, v{a0}, vcc""")
    assert (lrow0 // 4) % 2 == 0
    n = 0
    for m in range(ng // nw):
        for mat in range(2):
            k(f"""s_add_u32 s18, s16, {m*nw*4*3584}
s_add_u32 m0, s17, {mat*65536 + m*nw*1024}
buffer_load_dwordx4 v{a0+2+mat}, s[{56+4*mat}:{59+4*mat}], s18 offen lds""")
            n += 1
    return n
def wtr_addr(k, dst, t1, t2):
    k(f"""v_bfe_u32 v{t1}, v1, 4, 1
v_lshrrev_b32 v{t2}, 5, v1
v_lshlrev_b32 v{dst}, 16, v{t1}
v_xor_b32 v{t1}, v{t1}, v{t2}
v_lshlrev_b32 v{t1}, 2, v{t1}
v_lshlrev_b32 v{t2}, 10, v{t2}
v_add_u32 v{dst}, v{dst}, v{t2}
v_bfe_u32 v{t2}, v1, 2, 2
v_add_u32 v{t1}, v{t1}, v{t2}
v_lshlrev_b32 v{t2}, 8, v{t2}
v_add_u32 v{dst}, v{dst}, v{t2}
v_lshlrev_b32 v{t1}, 1, v{t1}
v_bfe_u32 v{t2}, v1, 1, 1
s_lshl_b32 s16, s10, 1
v_add_u32 v{t2}, s16, v{t2}
v_xor_b32 v{t1}, v{t1}, v{t2}
v_lshlrev_b32 v{t1}, 4, v{t1}
v_add_u32 v{dst}, v{dst}, v{t1}
v_and_b32 v{t2}, 1, v1
v_lshlrev_b32 v{t2}, 3, v{t2}
v_add_u32 v{dst}, v{dst}, v{t2}""")
    if L_BIG: k(f"v_add_u32 v{dst}, {L_BIG}, v{dst}")
def wtr_read(k, addr, wreg0, a0, a1):
    for a in range(a0, a1):
        for tb in range(2):
            for jh in range(2):
                r = wreg0 + 4*(2*(a-a0)+tb) + 2*jh
                k(f"ds_read_b64_tr_b16 v[{r}:{r+1}], v{addr} offset:{(32*a + 16*jh + 8*tb)*256}")
def ln_stats(k):
    for i in range(4):
        k(f"v_lshlrev_b32 v{12+2*i}, 16, v{8+i}\nv_and_b32 v{13+2*i}, 0xffff0000, v{8+i}")
    k("v_readfirstlane_b32 s14, v12")
    for i in range(4):
        k(f"v_pk_add_f32 v[{12+2*i}:{13+2*i}], v[{12+2*i}:{13+2*i}], s[14:15] op_sel_hi:[1,0] neg_lo:[0,1] neg_hi:[0,1]")
    k("""v_pk_add_f32 v[20:21], v[12:13], v[14:15]
v_pk_mul_f32 v[22:23], v[12:13], v[12:13]
v_pk_add_f32 v[24:25], v[16:17], v[18:19]
v_pk_fma_f32 v[22:23], v[14:15], v[14:15], v[22:23]
v_pk_add_f32 v[20:21], v[20:21], v[24:25]
v_pk_fma_f32 v[22:23], v[16:17], v[16:17], v[22:23]
v_add_f32 v20, v20, v21
v_pk_fma_f32 v[22:23], v[18:19], v[18:19], v[22:23]
v_add_f32 v22, v22, v23""")
    reduce64_pair(k, 20, 22)
    k("""v_mul_f32 v20, 0x3b000000, v20
v_mul_f32 v22, 0x3b000000, v22
v_fma_f32 v22, -v20, v20, v22
v_add_f32 v22, 0x3727c5ac, v22
v_rsq_f32 v22, v22
v_readlane_b32 s14, v20, 63
v_readlane_b32 s16, v22, 63""")
    for i in range(4):
        k(f"v_pk_add_f32 v[{12+2*i}:{13+2*i}], v[{12+2*i}:{13+2*i}], s[14:15] op_sel_hi:[1,0] neg_lo:[0,1] neg_hi:[0,1]")
    for i in range(4):
        k(f"v_pk_mul_f32 v[{12+2*i}:{13+2*i}], v[{12+2*i}:{13+2*i}], s[16:17] op_sel_hi:[1,0]")
def wd_tile_load(k):
    k("""s_sub_u32 s16, s2, 32
s_lshr_b32 s17, s16, 1
s_lshl_b32 s17, s17, 14
s_and_b32 s18, s16, 1
s_lshl_b32 s18, s18, 9
s_add_u32 s17, s17, s18
v_lshrrev_b32 v112, 5, v0
v_lshlrev_b32 v112, 10, v112
v_and_b32 v113, 31, v0
v_lshlrev_b32 v113, 4, v113
v_add_u32 v112, v112, v113
v_add_u32 v112, s17, v112
global_load_dwordx4 v[104:107], v112, s[44:45]""")
def prep_lds_write(k, wd):
    if wd:
        k(f"""v_lshrrev_b32 v112, 5, v0
v_mul_u32_u24 v112, 576, v112
v_and_b32 v113, 31, v0
v_lshlrev_b32 v113, 4, v113
v_add_u32 v112, v112, v113
v_add_u32 v112, {L_SM + S_WD}, v112
ds_write_b128 v112, v[104:107]""")
    k(f"""v_min_u32 v113, 256, v0
v_lshlrev_b32 v113, 4, v113
v_add_u32 v113, {L_SM + S_WF}, v113
ds_write_b128 v113, v[96:99]
ds_write_b128 v113, v[100:103] offset:4128""")
def prep_out(k, wd):
    D = 96
    if wd:
        k(f"""v_lshrrev_b32 v112, 5, v1
v_lshlrev_b32 v112, 2, v112
v_bfe_u32 v113, v1, 2, 2
v_add_u32 v112, v112, v113
v_mul_u32_u24 v112, 576, v112
v_and_b32 v113, 3, v1
v_lshlrev_b32 v113, 3, v113
v_add_u32 v112, v112, v113
v_bfe_u32 v113, v1, 4, 1
v_lshlrev_b32 v113, 5, v113
v_add_u32 v112, v112, v113
s_lshl_b32 s16, s10, 6
s_add_u32 s16, s16, {L_SM + S_WD}
v_add_u32 v112, s16, v112""")
        for jh in range(2):
            k(f"ds_read_b64_tr_b16 v[{D+2*jh}:{D+2*jh+1}], v112 offset:{jh*8*576}")
    F = 100
    k(f"""v_lshrrev_b32 v114, 1, v0
v_and_b32 v115, 1, v0
v_mul_u32_u24 v116, {4*514}, v115
v_lshlrev_b32 v117, 1, v114
v_add_u32 v116, v116, v117
v_add_u32 v116, {L_SM + S_WF}, v116""")
    for i in range(4):
        k(f"ds_read_u16 v{F+i}, v116 offset:{i*514}")
        k(f"ds_read_u16 v{F+4+i}, v116 offset:{4128+i*514}")
    k(f"v_min_u32 v117, 1, v0\nv_mul_u32_u24 v117, {4*514}, v117\nv_add_u32 v117, {L_SM + S_WF}, v117")
    for i in range(4):
        k(f"ds_read_u16 v{118+i}, v117 offset:{512+i*514}")
        k(f"ds_read_u16 v{122+i}, v117 offset:{4128+512+i*514}")
    if wd:
        k(f"""s_sub_u32 s17, s2, 32
s_and_b32 s18, s17, 1
s_lshl_b32 s18, s18, 2
s_lshr_b32 s19, s10, 1
s_add_u32 s18, s18, s19
s_mul_i32 s18, s18, 112
s_lshr_b32 s19, s17, 1
s_add_u32 s18, s18, s19
s_lshl_b32 s18, s18, 1
s_and_b32 s19, s10, 1
s_add_u32 s18, s18, s19
s_lshl_b32 s18, s18, 10
s_add_u32 s18, s18, {WS_WD}
v_add_u32 v112, s18, v3""")
    k(f"""s_mul_i32 s18, s2, {ZS}
s_add_u32 s18, s18, {WS_WT}
v_add_u32 v113, s18, v6
s_waitcnt lgkmcnt(0)""")
    if wd: k(f"global_store_dwordx4 v112, v[{D}:{D+3}], s[6:7] sc1")
    for i in range(4):
        k(f"v_lshl_or_b32 v{F+i}, v{F+4+i}, 16, v{F+i}")
    for i in range(4):
        k(f"v_lshl_or_b32 v{118+i}, v{122+i}, 16, v{118+i}")
    k(f"global_store_dwordx4 v113, v[{F}:{F+3}], s[6:7] sc1")
    lab = k.label("ny")
    k(f"""s_cmp_lg_u32 s10, 0
s_cbranch_scc1 {lab}
v_add_u32 v113, 8192, v113
v_mov_b32 v124, v118
v_mov_b32 v125, v119
v_mov_b32 v126, v120
v_mov_b32 v127, v121
s_mov_b64 exec, 3
global_store_dwordx4 v113, v[124:127], s[6:7] sc1
s_mov_b64 exec, -1
{lab}:""")
MW = 128
MC_ = 92
MT = 76
def mod_issue(k):
    k(f"""v_lshrrev_b32 v112, 2, v0
v_mul_u32_u24 v113, 6144, v112
v_and_b32 v114, 3, v0
v_lshlrev_b32 v114, 4, v114
v_add_u32 v113, v113, v114
v_lshlrev_b32 v112, 1, v112
s_lshl_b32 s16, s2, 6
v_add_u32 v114, s16, v113""")
    for i in range(4):
        addbase(k, 18, 66, i*128*6144)
        k(f"global_load_dwordx4 v[{MW+4*i}:{MW+4*i+3}], v114, s[18:19]")
    for i in range(4):
        k(f"global_load_ushort v{MC_+i}, v112, s[64:65] offset:{256*i}")
def mod_issue2(k):
    k("""s_lshl_b32 s16, s2, 7
s_add_u32 s16, s16, 2048
v_add_u32 v114, s16, v113""")
    for b in range(2):
        for i in range(4):
            addbase(k, 18, 66, i*128*6144 + 64*b)
            k(f"global_load_dwordx4 v[{MW+16*(b+1)+4*i}:{MW+16*(b+1)+4*i+3}], v114, s[18:19]")
def mod_silu(k):
    T = MT
    for i in range(4):
        c = MC_+i
        k(f"v_lshlrev_b32 v{c}, 16, v{c}\nv_mul_f32 v{T+i}, 0xbfb8aa3b, v{c}")
    for i in range(4): k(f"v_exp_f32 v{T+i}, v{T+i}")
    for i in range(4): k(f"v_add_f32 v{T+i}, 1.0, v{T+i}")
    for i in range(4): k(f"v_rcp_f32 v{T+i}, v{T+i}")
    for i in range(4): k(f"v_mul_f32 v{T+i}, v{MC_+i}, v{T+i}")
    for i in range(4): k(f"v_cvt_pk_bf16_f32 v{T+i}, v{T+i}, v{T+i}")
    for i in range(4): k(f"v_lshlrev_b32 v{MC_+i}, 16, v{T+i}")
def mod_block(k, R0, scbk, urgent, slot):
    T = MT
    for i in range(4):
        for j in range(4):
            k(f"v_lshlrev_b32 v{T+8+2*j}, 16, v{R0+4*i+j}\nv_and_b32 v{T+9+2*j}, 0xffff0000, v{R0+4*i+j}")
        s = MC_+i
        for j in range(4):
            if i == 0:
                k(f"v_mul_f32 v{T+2*j}, v{T+8+2*j}, v{s}\nv_mul_f32 v{T+2*j+1}, v{T+9+2*j}, v{s}")
            else:
                k(f"v_fmac_f32 v{T+2*j}, v{T+8+2*j}, v{s}\nv_fmac_f32 v{T+2*j+1}, v{T+9+2*j}, v{s}")
    for sh in (4, 8):
        for j in range(8):
            k(f"v_add_f32_dpp v{T+j}, v{T+j}, v{T+j} row_ror:{sh} row_mask:0xf bank_mask:0xf")
    for sw in ("v_permlane16_swap_b32", "v_permlane32_swap_b32"):
        for j in range(8): k(f"v_mov_b32 v{T+8+j}, v{T+j}")
        for j in range(8): k(f"{sw} v{T+j}, v{T+8+j}")
        for j in range(8): k(f"v_add_f32 v{T+j}, v{T+j}, v{T+8+j}")
    base = L_SM + S_MODR + 1024*slot
    k(f"""v_lshrrev_b32 v{T+8}, 6, v0
v_lshlrev_b32 v{T+8}, 7, v{T+8}
v_and_b32 v{T+9}, 3, v0
v_lshlrev_b32 v{T+9}, 5, v{T+9}
v_add_u32 v{T+8}, v{T+8}, v{T+9}
v_add_u32 v{T+8}, {base}, v{T+8}
s_mov_b64 exec, 15
ds_write_b128 v{T+8}, v[{T}:{T+3}]
ds_write_b128 v{T+8}, v[{T+4}:{T+7}] offset:16
s_mov_b64 exec, -1
s_waitcnt lgkmcnt(0)
s_barrier""")
    lab = k.label("modw0")
    k(f"""s_cmp_lg_u32 s10, 0
s_cbranch_scc1 {lab}
v_and_b32 v{T+9}, 31, v1
v_lshlrev_b32 v{T+8}, 2, v{T+9}
v_add_u32 v{T+10}, {base}, v{T+8}""")
    for w in range(8): k(f"ds_read_b32 v{T+w}, v{T+10} offset:{128*w}")
    k("s_waitcnt lgkmcnt(0)")
    k(f"""v_add_f32 v{T}, v{T}, v{T+1}
v_add_f32 v{T+2}, v{T+2}, v{T+3}
v_add_f32 v{T+4}, v{T+4}, v{T+5}
v_add_f32 v{T+6}, v{T+6}, v{T+7}
v_add_f32 v{T}, v{T}, v{T+2}
v_add_f32 v{T+4}, v{T+4}, v{T+6}
v_add_f32 v{T}, v{T}, v{T+4}
v_cvt_pk_bf16_f32 v{T}, v{T}, v{T}
v_lshlrev_b32 v{T}, 16, v{T}
v_add_f32 v{T+1}, 1.0, v{T}
v_cvt_pk_bf16_f32 v{T+1}, v{T+1}, v{T+1}
v_lshlrev_b32 v{T+1}, 16, v{T+1}
s_lshr_b32 s16, s{scbk}, 4
s_cmp_eq_u32 s16, 1
s_cselect_b32 s17, 1, 0
s_cmp_eq_u32 s16, 4
s_cselect_b32 s17, 1, s17
s_cmp_eq_u32 s17, 1
s_cselect_b64 vcc, -1, 0
v_cndmask_b32 v{T}, v{T}, v{T+1}, vcc""")
    if urgent:
        k(f"""v_mov_b32_dpp v{T+1}, v{T} quad_perm:[1,0,3,2] row_mask:0xf bank_mask:0xf
v_lshrrev_b32 v{T+2}, 16, v{T}
v_or_b32 v{T+2}, v{T+2}, v{T+1}
v_mov_b32 v{T+3}, s3
v_lshlrev_b32 v{T+8}, 2, v{T+9}
s_lshl_b32 s16, s{scbk}, 7
s_add_u32 s16, s16, {WS_MODG}
v_add_u32 v{T+8}, s16, v{T+8}
s_mov_b32 s16, 0x55555555
s_mov_b32 s17, 0
s_mov_b64 exec, s[16:17]
global_store_dwordx2 v{T+8}, v[{T+2}:{T+3}], s[6:7] sc1
s_mov_b64 exec, -1""")
        if getattr(k, "debug", False):
            k(f"""s_lshl_b32 s16, s{scbk}, 7
v_lshlrev_b32 v{T+8}, 2, v{T+9}
v_add_u32 v{T+8}, s16, v{T+8}
s_mov_b32 s16, -1
s_mov_b32 s17, 0
s_mov_b64 exec, s[16:17]
global_store_dword v{T+8}, v{T}, s[6:7] sc1
s_mov_b64 exec, -1""")
    else:
        k(f"""s_lshl_b32 s16, s{scbk}, 7
v_add_u32 v{T+8}, s16, v{T+8}
s_mov_b32 s16, -1
s_mov_b32 s17, 0
s_mov_b64 exec, s[16:17]
global_store_dword v{T+8}, v{T}, s[6:7] sc1
s_mov_b64 exec, -1""")
    k(f"{lab}:")
```

```python
from common import *
from ph0 import S_MODS
def p1_tables():
    regs = []
    for mt in range(2):
        for fn in (cosr, sinr):
            for r in range(4):
                d2 = 16*mt + 4*LQ + r
                regs.append(f32u(fn(d2*LI, 512)))
    for mt in range(2):
        for out in range(2):
            for jj in range(4):
                d2 = 16*mt + 4*LQ + jj
                c = cosr(d2*LI, 32); s = sinr(d2*LI, 32)
                regs.append(pk(c, s) if out == 0 else pk(-s, c))
    for fn, sg in ((cosr, 1), (sinr, -1)):
        for h in range(2):
            d1a = 4*LQ + 2*h; d1b = d1a + 1
            regs.append(pk(sg*fn(d1a*LI, 16), sg*fn(d1b*LI, 16)))
    return regs
def mod_poll(k):
    k(f"v_add_u32 v112, {WS_MODG}, v6")
    lab = spin_begin(k, "modp")
    k("""global_load_dwordx4 v[116:119], v112, s[6:7] sc1
s_waitcnt vmcnt(0)
v_xor_b32 v113, s3, v117
v_xor_b32 v114, s3, v119
v_or_b32 v113, v113, v114
v_cmp_ne_u32 vcc, 0, v113""")
    spin_end(k, lab)
    k(f"""v_lshlrev_b32 v112, 3, v0
v_add_u32 v112, {L_SM + S_MODS}, v112
v_mov_b32 v117, v118
ds_write_b64 v112, v[116:117]""")
def p1_compute(k):
    T = 40
    MA, MC = 76, 84
    k(f"""v_add_u32 v2, {L_SM + S_MODS}, v3
ds_read_b128 v[20:23], v2
ds_read_b128 v[24:27], v2 offset:1024""")
    k(f"""s_mul_i32 s18, s10, 1280
s_add_u32 s18, s18, {L_SM}
v_lshrrev_b32 v7, 4, v1
v_lshlrev_b32 v28, 5, v7
v_add_u32 v28, v28, v3
v_add_u32 v28, s18, v28
v_mul_u32_u24 v29, 288, v7
v_bfe_u32 v30, v1, 2, 2
v_lshlrev_b32 v30, 6, v30
v_add_u32 v29, v29, v30
v_and_b32 v30, 3, v1
v_lshlrev_b32 v30, 3, v30
v_add_u32 v29, v29, v30
v_add_u32 v29, s18, v29""")
    k("s_waitcnt lgkmcnt(0)")
    for i in range(4):
        k(f"v_lshlrev_b32 v{MA+2*i}, 16, v{20+i}\nv_and_b32 v{MA+2*i+1}, 0xffff0000, v{20+i}")
        k(f"v_lshlrev_b32 v{MC+2*i}, 16, v{24+i}\nv_and_b32 v{MC+2*i+1}, 0xffff0000, v{24+i}")
    for i in range(4):
        k(f"v_pk_fma_f32 v[{12+2*i}:{13+2*i}], v[{12+2*i}:{13+2*i}], v[{MC+2*i}:{MC+2*i+1}], v[{MA+2*i}:{MA+2*i+1}]")
    for i in range(4):
        k(f"v_cvt_pk_bf16_f32 v{8+i}, v{12+2*i}, v{13+2*i}")
    k("ds_write_b128 v28, v[8:11]\ns_waitcnt lgkmcnt(0)")
    k("ds_read_b64_tr_b16 v[12:13], v29\nds_read_b64_tr_b16 v[14:15], v29 offset:32")
    k("""v_and_b32 v32, 15, v1
v_cmp_eq_u32 vcc, 0, v32
v_mov_b32 v33, 0x3f80
v_mov_b32 v34, 0xbf80
v_cndmask_b32 v28, 0, v33, vcc
v_cndmask_b32 v29, 0, v34, vcc
v_mov_b32 v30, v28
v_mov_b32 v31, v29""")
    k("s_waitcnt lgkmcnt(0)")
    B1 = T + 32
    U = 96
    for mt in range(2):
        k(f"v_mfma_f32_16x16x16_bf16 v[{U+8*mt}:{U+8*mt+3}], v[{12+2*mt}:{13+2*mt}], v[{B1}:{B1+1}], 0")
        k(f"v_mfma_f32_16x16x16_bf16 v[{U+8*mt+4}:{U+8*mt+7}], v[{12+2*mt}:{13+2*mt}], v[{B1+2}:{B1+3}], 0")
    P = 112
    for mt in range(2):
        re = U+8*mt; im = re+4; c = T+8*mt; s = c+4
        for h in range(2):
            o = 2*h
            k(f"v_pk_mul_f32 v[{P+4*mt+o}:{P+4*mt+o+1}], v[{re+o}:{re+o+1}], v[{c+o}:{c+o+1}]")
            k(f"v_pk_mul_f32 v[{P+8+4*mt+o}:{P+8+4*mt+o+1}], v[{im+o}:{im+o+1}], v[{c+o}:{c+o+1}]")
            k(f"v_pk_fma_f32 v[{P+4*mt+o}:{P+4*mt+o+1}], v[{im+o}:{im+o+1}], v[{s+o}:{s+o+1}], v[{P+4*mt+o}:{P+4*mt+o+1}]")
            k(f"v_pk_fma_f32 v[{P+8+4*mt+o}:{P+8+4*mt+o+1}], v[{re+o}:{re+o+1}], v[{s+o}:{s+o+1}], v[{P+8+4*mt+o}:{P+8+4*mt+o+1}] neg_lo:[1,0,0] neg_hi:[1,0,0]")
    for mt in range(2):
        for r in range(4):
            k(f"v_cvt_pk_bf16_f32 v{12+4*mt+r}, v{P+4*mt+r}, v{P+8+4*mt+r}")
    A2 = T + 16
    X = 96
    k(f"v_mfma_f32_16x16x32_bf16 v[{X}:{X+3}], v[{A2}:{A2+3}], v[12:15], 0")
    k(f"v_mfma_f32_16x16x32_bf16 v[{X+4}:{X+7}], v[{A2+4}:{A2+7}], v[12:15], 0")
    k(f"v_mfma_f32_16x16x32_bf16 v[{X+8}:{X+11}], v[28:31], v[12:15], 0")
    k(f"v_mfma_f32_16x16x32_bf16 v[{X}:{X+3}], v[{A2+8}:{A2+11}], v[16:19], v[{X}:{X+3}]")
    k(f"v_mfma_f32_16x16x32_bf16 v[{X+4}:{X+7}], v[{A2+12}:{A2+15}], v[16:19], v[{X+4}:{X+7}]")
    k(f"v_mfma_f32_16x16x32_bf16 v[{X+8}:{X+11}], v[28:31], v[16:19], v[{X+8}:{X+11}]")
    LB = L_SM + 10240; RS = 328
    k(f"""s_mul_i32 s18, s10, {RS*4}
s_add_u32 s18, s18, {LB}
v_and_b32 v32, 15, v1
v_mul_u32_u24 v33, 80, v7
v_add_u32 v32, v32, v33
v_lshlrev_b32 v32, 2, v32
v_add_u32 v32, s18, v32""")
    for r in range(4):
        k(f"v_cvt_pk_bf16_f32 v{8+r}, v{X+r}, v{X+4+r}")
    k(f"v_cvt_pk_bf16_f32 v33, v{X+8}, 0")
    for r in range(4):
        k(f"ds_write_b32 v32, v{8+r} offset:{64*r}")
    k(f"""v_mov_b32 v34, s18
s_mov_b64 exec, 1
ds_write_b32 v34, v33 offset:{320*4}
s_mov_b64 exec, -1""")
    lab = k.label("wa")
    k(f"s_cmp_lt_u32 s10, 4\ns_cbranch_scc1 {lab}\ns_waitcnt vmcnt(0)\n{lab}:")
    k("s_waitcnt lgkmcnt(0)\ns_barrier")
    k(f"""v_lshrrev_b32 v8, 1, v0
v_lshrrev_b32 v9, 6, v8
v_lshlrev_b32 v9, 4, v9
v_add_u32 v9, v9, v8
v_lshlrev_b32 v9, 2, v9
v_and_b32 v10, 1, v0
v_mul_u32_u24 v11, {4*RS*4}, v10
v_add_u32 v9, v9, v11
v_add_u32 v9, {LB}, v9""")
    for i in range(4):
        k(f"ds_read_b32 v{12+i}, v9 offset:{i*RS*4}")
    k(f"""v_min_u32 v11, 1, v0
v_mul_u32_u24 v11, {4*RS*4}, v11
v_add_u32 v11, {LB + 320*4}, v11""")
    for i in range(4):
        k(f"ds_read_b32 v{16+i}, v11 offset:{i*RS*4}")
    k(f"""s_mul_i32 s18, s2, {ZS}
s_add_u32 s18, s18, {WS_Z1}
v_add_u32 v8, s18, v6
v_add_u32 v20, 8192, v8
s_waitcnt lgkmcnt(0)
global_store_dwordx4 v8, v[12:15], s[6:7] sc1""")
    lab = k.label("ny")
    k(f"""s_cmp_lg_u32 s10, 0
s_cbranch_scc1 {lab}
s_mov_b64 exec, 3
global_store_dwordx4 v20, v[16:19], s[6:7] sc1
s_mov_b64 exec, -1
{lab}:""")
def flag_store(k, base):
    lab = k.label("fs")
    k(f"""s_cmp_lg_u32 s10, 0
s_cbranch_scc1 {lab}
s_lshl_b32 s16, s2, 7
s_add_u32 s16, s16, {base}
v_mov_b32 v112, s16
v_mov_b32 v113, s3
s_mov_b64 exec, 1
global_store_dword v112, v113, s[6:7] sc1
s_mov_b64 exec, -1
{lab}:""")
def flag_check(k, base, a, name="flg"):
    skip = k.label("fcs")
    k(f"""s_cmp_ge_u32 s10, 4
s_cbranch_scc1 {skip}
v_lshlrev_b32 v{a}, 7, v0
v_add_u32 v{a}, {base}, v{a}""")
    lab = spin_begin(k, name)
    k(f"""global_load_dword v{a+1}, v{a}, s[6:7] sc1
s_waitcnt vmcnt(0)
v_cmp_ne_u32 vcc, s3, v{a+1}""")
    spin_end(k, lab)
    k(f"{skip}:")
```

```python
from common import *
F64, F64b, F32, F32b = 192, 208, 224, 240
TC, TS, WR, WI, D1r, D1i, Pr, Pi = 64, 72, 80, 88, 96, 104, 112, 120
def p2_fconst(k):
    k("""v_and_b32 v112, 15, v1
v_lshrrev_b32 v113, 4, v1
s_and_b32 s15, s10, 3
s_lshl_b32 s15, s15, 4
s_mov_b32 s14, 0x8000""")
    gen_t64(k, 114, 1, 115)
    k("""v_add_u32 v115, s15, v112
v_lshlrev_b32 v116, 2, v115
v_lshlrev_b32 v117, 2, v113
v_mul_u32_u24 v117, v117, v116""")
    for ks in range(4):
        for jj in range(4):
            k(f"v_mad_u32_u24 v{F64b+4*ks+jj}, v116, {16*ks+jj}, v117")
    for i in range(16):
        k(f"ds_bpermute_b32 v{F64+i}, v{F64b+i}, v114")
    for tile in range(2):
        k(f"v_lshlrev_b32 v118, 3, v112\nv_add_u32 v118, {128*tile}, v118\nv_lshlrev_b32 v119, 2, v113\nv_mul_u32_u24 v119, v119, v118")
        for ks in range(2):
            for jj in range(4):
                k(f"v_mad_u32_u24 v{F32b+8*tile+4*ks+jj}, v118, {16*ks+jj}, v119")
    for i in range(16):
        k(f"ds_bpermute_b32 v{F32+i}, v{F32b+i}, v114")
    k("s_waitcnt lgkmcnt(0)")
    derive_m2(k, F64b, F64, 16, 14)
    derive_m2(k, F32b, F32, 16, 14)
def p2_pre(k):
    k("""v_and_b32 v2, 15, v1
v_lshrrev_b32 v3, 4, v1
s_and_b32 s15, s10, 3
s_lshl_b32 s15, s15, 4
v_add_u32 v12, s15, v2""")
    k("""v_cvt_f32_u32 v58, v12
v_mul_f32 v58, 0x3a000000, v58
v_lshlrev_b32 v59, 2, v3
v_cvt_f32_u32 v59, v59
v_mul_f32 v59, v59, v58""")
    for mt in range(2):
        for r in range(4):
            k(f"s_mov_b32 s16, {hex(int(f32u(np.float32(16*mt+r))))}\nv_fma_f32 v{TS+4*mt+r}, v58, s16, v59")
    for i in range(8):
        k(f"v_cos_f32 v{TC+i}, v{TS+i}")
    for i in range(8):
        k(f"v_sin_f32 v{TS+i}, v{TS+i}")
    k(f"""s_mov_b32 s16, {hex(int(f32u(np.float32(2**-9.5))))}
s_and_b32 s17, s34, 255
s_cmp_eq_u32 s17, 0
s_cselect_b32 s16, {hex(int(f32u(np.float32(2**-10))))}, s16""")
    for i in range(0, 8, 2):
        k(f"v_pk_mul_f32 v[{TC+i}:{TC+i+1}], v[{TC+i}:{TC+i+1}], s[16:17] op_sel_hi:[1,0]")
        k(f"v_pk_mul_f32 v[{TS+i}:{TS+i+1}], v[{TS+i}:{TS+i+1}], s[16:17] op_sel_hi:[1,0]")
    k(f"""s_lshr_b32 s33, s10, 2
s_mul_i32 s33, s33, 8704
s_add_u32 s33, s33, {L_SM}""")
    k("""v_mul_u32_u24 v60, 1088, v3
v_lshlrev_b32 v61, 2, v12
v_add_u32 v60, v60, v61
v_add_u32 v60, s33, v60
v_mul_u32_u24 v61, 272, v2
v_lshlrev_b32 v62, 4, v3
v_add_u32 v61, v61, v62
v_add_u32 v61, s33, v61""")
    k(f"""v_and_b32 v4, 255, v0
v_lshrrev_b32 v5, 1, v4
v_mul_u32_u24 v8, {ZS}, v5
v_and_b32 v6, 1, v4
v_lshlrev_b32 v6, 4, v6
v_add_u32 v8, v8, v6
s_lshl_b32 s16, s34, 5
s_add_u32 s17, s16, {WS_Z1}
v_add_u32 v8, s17, v8
v_add_u32 v9, {128*ZS}, v8""")
    k("""v_and_b32 v10, 31, v5
v_mul_u32_u24 v10, 272, v10
v_lshrrev_b32 v11, 5, v5
v_lshlrev_b32 v11, 5, v11
v_add_u32 v10, v10, v11
v_add_u32 v10, v10, v6
v_add_u32 v10, s33, v10""")
    k(f"""v_lshlrev_b32 v13, 5, v3
v_lshrrev_b32 v14, 3, v2
v_add_u32 v13, v13, v14
s_and_b32 s17, s10, 3
s_lshl_b32 s17, s17, 1
v_add_u32 v13, s17, v13
v_mul_u32_u24 v13, {ZS}, v13
v_and_b32 v14, 7, v2
v_lshlrev_b32 v14, 2, v14
v_add_u32 v13, v13, v14
s_add_u32 s17, s16, {WS_WT}
v_add_u32 v13, s17, v13""")
def p2_main(k):
    for tt in range(2):
        for r in range(4):
            addbase(k, 18, 6, (tt*128 + r*8)*ZS)
            k(f"global_load_dword v{48+4*tt+r}, v13, s[18:19] sc1")
    lab = spin_begin(k, "z1p")
    k("""global_load_dwordx4 v[16:19], v8, s[6:7] sc1
global_load_dwordx4 v[20:23], v9, s[6:7] sc1
s_waitcnt vmcnt(0)
v_max3_u32 v24, v16, v17, v18
v_max3_u32 v24, v24, v19, v20
v_max3_u32 v24, v24, v21, v22
v_max_u32 v24, v24, v23
v_cmp_eq_u32 vcc, -1, v24""")
    spin_end(k, lab)
    k.stamp(8)
    k("ds_write_b128 v10, v[16:19]\nds_write_b128 v10, v[20:23] offset:128")
    for i in range(8):
        k(f"v_lshlrev_b32 v{WR+i}, 16, v{48+i}\nv_and_b32 v{WI+i}, 0xffff0000, v{48+i}")
    k("s_waitcnt lgkmcnt(0)\ns_barrier")
    for mt in range(2):
        for ks in range(4):
            k(f"ds_read_b128 v[{16+16*mt+4*ks}:{16+16*mt+4*ks+3}], v61 offset:{mt*4352 + ks*64}")
    for ks in range(4):
        k(f"s_waitcnt lgkmcnt({0 if ks else 0})") if ks == 0 else None
        for mt in range(2):
            a = 16+16*mt+4*ks
            c0 = "0" if ks == 0 else f"v[{D1r+4*mt}:{D1r+4*mt+3}]"
            c1 = "0" if ks == 0 else f"v[{D1i+4*mt}:{D1i+4*mt+3}]"
            k(f"v_mfma_f32_16x16x32_bf16 v[{D1r+4*mt}:{D1r+4*mt+3}], v[{a}:{a+3}], v[{F64+4*ks}:{F64+4*ks+3}], {c0}")
            k(f"v_mfma_f32_16x16x32_bf16 v[{D1i+4*mt}:{D1i+4*mt+3}], v[{a}:{a+3}], v[{F64b+4*ks}:{F64b+4*ks+3}], {c1}")
    cmul_tw(k, Pr, Pi, D1r, D1i, TC, TS, 8)
    for i in range(8):
        k(f"v_cvt_pk_bf16_f32 v{16+i}, v{Pr+i}, v{Pi+i}")
    def f32stage():
        for ks in range(2):
            for tt in range(2):
                c0 = "0" if ks == 0 else f"v[{D1r+4*tt}:{D1r+4*tt+3}]"
                c1 = "0" if ks == 0 else f"v[{D1i+4*tt}:{D1i+4*tt+3}]"
                k(f"v_mfma_f32_16x16x32_bf16 v[{D1r+4*tt}:{D1r+4*tt+3}], v[{F32+8*tt+4*ks}:{F32+8*tt+4*ks+3}], v[{16+4*ks}:{16+4*ks+3}], {c0}")
                k(f"v_mfma_f32_16x16x32_bf16 v[{D1i+4*tt}:{D1i+4*tt+3}], v[{F32b+8*tt+4*ks}:{F32b+8*tt+4*ks+3}], v[{16+4*ks}:{16+4*ks+3}], {c1}")
    f32stage()
    for o in range(0, 8, 2):
        k(f"v_pk_mul_f32 v[{Pr+o}:{Pr+o+1}], v[{D1r+o}:{D1r+o+1}], v[{WR+o}:{WR+o+1}]")
        k(f"v_pk_mul_f32 v[{Pi+o}:{Pi+o+1}], v[{D1r+o}:{D1r+o+1}], v[{WI+o}:{WI+o+1}] neg_lo:[1,0] neg_hi:[1,0]")
    for o in range(0, 8, 2):
        k(f"v_pk_fma_f32 v[{Pr+o}:{Pr+o+1}], v[{D1i+o}:{D1i+o+1}], v[{WI+o}:{WI+o+1}], v[{Pr+o}:{Pr+o+1}] neg_lo:[1,0,0] neg_hi:[1,0,0]")
        k(f"v_pk_fma_f32 v[{Pi+o}:{Pi+o+1}], v[{D1i+o}:{D1i+o+1}], v[{WR+o}:{WR+o+1}], v[{Pi+o}:{Pi+o+1}] neg_lo:[1,0,0] neg_hi:[1,0,0]")
    for i in range(8):
        k(f"v_cvt_pk_bf16_f32 v{16+i}, v{Pr+i}, v{Pi+i}")
    f32stage()
    cmul_tw(k, Pr, Pi, D1r, D1i, TC, TS, 8)
    for i in range(8):
        k(f"v_cvt_pk_bf16_f32 v{16+i}, v{Pr+i}, v{Pi+i}")
    k("s_barrier")
    for mt in range(2):
        for r in range(4):
            k(f"ds_write_b32 v60, v{16+4*mt+r} offset:{(16*mt+r)*272}")
    k("s_waitcnt lgkmcnt(0)\ns_barrier")
    for nt in range(2):
        for ks in range(4):
            k(f"ds_read_b128 v[{24+16*nt+4*ks}:{24+16*nt+4*ks+3}], v61 offset:{nt*4352+ks*64}")
    k(f"""s_and_b32 s16, s10, 3
s_lshl_b32 s16, s16, 11
s_lshl_b32 s17, s34, 13
s_add_u32 s16, s16, s17
s_add_u32 s16, s16, {WS_Z2}
v_and_b32 v6, 7, v2
v_lshlrev_b32 v6, 8, v6
v_lshrrev_b32 v7, 3, v2
v_lshlrev_b32 v7, 6, v7
v_add_u32 v6, v6, v7
v_lshlrev_b32 v7, 4, v3
v_add_u32 v6, v6, v7
v_add_u32 v8, s16, v6
v_add_u32 v9, 128, v8
s_waitcnt lgkmcnt(0)""")
    for ks in range(4):
        for nt in range(2):
            b = 24+16*nt+4*ks
            c0 = "0" if ks == 0 else f"v[{D1r+4*nt}:{D1r+4*nt+3}]"
            c1 = "0" if ks == 0 else f"v[{D1i+4*nt}:{D1i+4*nt+3}]"
            k(f"v_mfma_f32_16x16x32_bf16 v[{D1r+4*nt}:{D1r+4*nt+3}], v[{F64+4*ks}:{F64+4*ks+3}], v[{b}:{b+3}], {c0}")
            k(f"v_mfma_f32_16x16x32_bf16 v[{D1i+4*nt}:{D1i+4*nt+3}], v[{F64b+4*ks}:{F64b+4*ks+3}], v[{b}:{b+3}], {c1}")
    for i in range(8):
        k(f"v_cvt_pk_bf16_f32 v{16+i}, v{D1r+i}, v{D1i+i}")
    for nt in range(2):
        k(f"global_store_dwordx4 v{8+nt}, v[{16+4*nt}:{16+4*nt+3}], s[6:7] sc1")
P2_BARRIERS = 3
```

```python
from common import *
from ph0 import x2_addr, h2_addr
S_V = 0
S_H = 18688
GA, SB, CB = 28, 36, 44
A1, A1b, B2, TC, TS = 56, 64, 72, 76, 84
def p3_pre(k):
    k(f"""v_lshrrev_b32 v6, 3, v2
v_lshlrev_b32 v6, 13, v6
v_lshlrev_b32 v7, 19, v3
v_add_u32 v6, v6, v7
v_and_b32 v7, 7, v2
v_lshlrev_b32 v7, 2, v7
v_add_u32 v6, v6, v7
s_lshl_b32 s13, s10, 14
s_lshr_b32 s14, s12, 1
s_lshl_b32 s14, s14, 11
s_and_b32 s15, s11, 7
s_lshl_b32 s15, s15, 8
s_add_u32 s14, s14, s15
s_lshr_b32 s15, s11, 3
s_lshl_b32 s15, s15, 6
s_add_u32 s14, s14, s15
s_and_b32 s15, s12, 1
s_lshl_b32 s15, s15, 5
s_add_u32 s14, s14, s15
s_add_u32 s14, s14, {WS_Z2}
s_add_u32 s13, s13, s14
v_add_u32 v6, s13, v6""")
    k(f"""s_lshl_b32 s15, s10, 2
s_add_u32 s15, s15, s14
s_add_u32 s15, s15, {256*8192}
v_mov_b32 v7, s15""")
    k("""s_lshl_b32 s16, s12, 3
s_add_u32 s16, s16, s10
s_lshl_b32 s17, s16, 5
s_add_u32 s17, s17, s11
s_lshl_b32 s17, s17, 10
v_lshlrev_b32 v8, 6, v2
v_lshlrev_b32 v9, 3, v3
v_add_u32 v8, v8, v9
v_lshlrev_b32 v10, 1, v8
v_add_u32 v9, s17, v8""")
    k("global_load_dwordx2 v[22:23], v9, s[4:5]\nglobal_load_dwordx2 v[24:25], v9, s[4:5] offset:32")
    k("v_add_u32 v11, 4096, v10")
    for T in range(2):
        k(f"global_load_dwordx4 v[{GA+4*T}:{GA+4*T+3}], v11, s[6:7] offset:{64*T} sc1")
        k(f"global_load_dwordx4 v[{SB+4*T}:{SB+4*T+3}], v11, s[6:7] offset:{2048+64*T} sc1")
    k("v_add_u32 v11, 8192, v10")
    for T in range(2):
        k(f"global_load_dwordx4 v[{CB+4*T}:{CB+4*T+3}], v11, s[6:7] offset:{64*T} sc1")
    for jj in range(4):
        k(f"s_add_u32 s{20+2*jj}, s6, {jj*131072}\ns_addc_u32 s{21+2*jj}, s7, 0")
    gen_t64(k, 4, 1, 12)
    k("s_mov_b32 s18, 0x8000")
    for T in range(2):
        k(f"v_lshlrev_b32 v12, 3, v2\nv_add_u32 v12, {128*T}, v12\nv_lshlrev_b32 v13, 2, v3\nv_mul_u32_u24 v13, v13, v12")
        for jj in range(4):
            k(f"v_mad_u32_u24 v{A1b+4*T+jj}, v12, {jj}, v13")
    k("v_lshlrev_b32 v12, 4, v2\nv_lshlrev_b32 v13, 2, v3\nv_mul_u32_u24 v13, v13, v12")
    for jj in range(4):
        k(f"v_mad_u32_u24 v{TC+jj}, v12, {jj}, v13")
    for i in range(8):
        k(f"ds_bpermute_b32 v{A1+i}, v{A1b+i}, v4")
    for jj in range(4):
        k(f"ds_bpermute_b32 v{B2+jj}, v{TC+jj}, v4")
    k("""v_lshrrev_b32 v12, 3, v2
s_lshl_b32 s19, s10, 1
v_add_u32 v12, s19, v12
v_cvt_f32_u32 v14, v12
v_mul_f32 v14, 0x3b000000, v14
v_lshlrev_b32 v13, 2, v3
v_cvt_f32_u32 v13, v13
v_mul_f32 v13, v13, v14""")
    k("s_waitcnt lgkmcnt(0)")
    for T in range(2):
        for r in range(4):
            k(f"s_mov_b32 s19, {hex(int(f32u(np.float32(16*T+r))))}\nv_fma_f32 v{TS+4*T+r}, v14, s19, v13")
    for i in range(8):
        k(f"v_cos_f32 v{TC+i}, v{TS+i}")
    for i in range(8):
        k(f"v_sin_f32 v{TS+i}, v{TS+i}")
    derive_m2(k, A1b, A1, 8, 18)
    k(f"""v_and_b32 v15, 7, v2
v_mul_u32_u24 v15, {584*4}, v15
v_mul_u32_u24 v12, 144, v12
v_add_u32 v15, v15, v12
v_lshlrev_b32 v12, 4, v3
v_add_u32 v15, v15, v12
v_add_u32 v15, {L_SM + S_V}, v15""")
    k(f"""s_mul_i32 s19, s10, {584*4}
s_add_u32 s19, s19, {L_SM + S_V}
v_mul_u32_u24 v21, 576, v3
v_lshlrev_b32 v12, 2, v2
v_add_u32 v21, v21, v12
v_add_u32 v21, s19, v21""")
    k(f"""v_mul_u32_u24 v26, 80, v2
v_lshlrev_b32 v12, 3, v3
v_add_u32 v26, v26, v12
v_add_u32 v26, s19, v26
v_lshrrev_b32 v27, 2, v1
v_mul_u32_u24 v27, 80, v27
v_and_b32 v12, 3, v1
v_lshlrev_b32 v12, 4, v12
v_add_u32 v27, v27, v12
v_add_u32 v27, s19, v27""")
    x2_addr(k, 52)
    h2_addr(k, 53, 12)
    k(f"""v_lshlrev_b32 v12, 2, v2
v_add_u32 v12, v12, v3
v_add_u32 v13, s10, v12
v_and_b32 v13, 7, v13
v_lshlrev_b32 v13, 4, v13
v_lshlrev_b32 v12, 7, v12
v_add_u32 v12, v12, v13
v_add_u32 v54, {L_SM + S_H}, v12
v_lshrrev_b32 v12, 3, v0
v_add_u32 v13, v12, v0
v_and_b32 v13, 7, v13
v_lshlrev_b32 v13, 4, v13
v_lshlrev_b32 v14, 7, v12
v_add_u32 v13, v13, v14
v_add_u32 v55, {L_SM + S_H}, v13""")
def p3_main(k):
    lab = spin_begin(k, "z2p")
    for jj in range(4):
        k(f"global_load_dword v{16+jj}, v6, s[{20+2*jj}:{21+2*jj}] sc1")
    k("""global_load_dword v20, v7, s[6:7] sc1
s_waitcnt vmcnt(0)
v_max3_u32 v12, v16, v17, v18
v_max3_u32 v12, v12, v19, v20
v_cmp_eq_u32 vcc, -1, v12""")
    spin_end(k, lab)
    k.stamp(12)
    Vr, Vi = 96, 104
    for T in range(2):
        k(f"v_mfma_f32_16x16x32_bf16 v[{Vr+4*T}:{Vr+4*T+3}], v[{A1+4*T}:{A1+4*T+3}], v[16:19], 0")
        k(f"v_mfma_f32_16x16x32_bf16 v[{Vi+4*T}:{Vi+4*T+3}], v[{A1b+4*T}:{A1b+4*T+3}], v[16:19], 0")
    Pr, Pi = 112, 120
    cmul_tw(k, Pr, Pi, Vr, Vi, TC, TS, 8)
    for i in range(8):
        k(f"v_cvt_pk_bf16_f32 v{Vr+i}, v{Pr+i}, v{Pi+i}")
    for T in range(2):
        k(f"ds_write_b128 v15, v[{Vr+4*T}:{Vr+4*T+3}] offset:{64*T}")
    k("v_lshlrev_b32 v20, 16, v20")
    for T in range(2):
        for r in range(4):
            if r & 1: k(f"v_sub_f32 v{Pr+4*T+r}, 0, v20")
            else: k(f"v_mov_b32 v{Pr+4*T+r}, v20")
    k("s_waitcnt lgkmcnt(0)\ns_barrier")
    for T in range(2):
        for jj in range(4):
            k(f"ds_read_b32 v{Vi+4*T+jj}, v21 offset:{jj*144+T*64}")
    for T in range(2):
        for h in range(2):
            k(f"v_lshlrev_b32 v{Vr+4*T+2*h}, 16, v{22+2*T+h}\nv_and_b32 v{Vr+4*T+2*h+1}, 0xffff0000, v{22+2*T+h}")
    k("s_waitcnt lgkmcnt(0)")
    for T in range(2):
        k(f"v_mfma_f32_16x16x32_bf16 v[{Pr+4*T}:{Pr+4*T+3}], v[{Vi+4*T}:{Vi+4*T+3}], v[{B2}:{B2+3}], v[{Pr+4*T}:{Pr+4*T+3}]")
    for o in range(0, 8, 2):
        k(f"v_pk_fma_f32 v[{Vr+o}:{Vr+o+1}], v[{Pr+o}:{Pr+o+1}], v[{GA+o}:{GA+o+1}], v[{Vr+o}:{Vr+o+1}]")
    for i in range(4):
        k(f"v_cvt_pk_bf16_f32 v{22+i}, v{Vr+2*i}, v{Vr+2*i+1}")
    k("ds_write_b64 v26, v[22:23]\nds_write_b64 v26, v[24:25] offset:32")
    for i in range(4):
        k(f"v_lshlrev_b32 v{Vr+2*i}, 16, v{22+i}\nv_and_b32 v{Vr+2*i+1}, 0xffff0000, v{22+i}")
    k(f"v_readfirstlane_b32 s30, v{Vr}")
    k("s_waitcnt lgkmcnt(0)\nds_read_b128 v[16:19], v27")
    for o in range(0, 8, 2):
        k(f"v_pk_add_f32 v[{Vr+o}:{Vr+o+1}], v[{Vr+o}:{Vr+o+1}], s[30:31] op_sel_hi:[1,0] neg_lo:[0,1] neg_hi:[0,1]")
    V = Vr
    k(f"""v_pk_add_f32 v[120:121], v[{V}:{V+1}], v[{V+2}:{V+3}]
v_pk_mul_f32 v[122:123], v[{V}:{V+1}], v[{V}:{V+1}]
v_pk_add_f32 v[124:125], v[{V+4}:{V+5}], v[{V+6}:{V+7}]
v_pk_fma_f32 v[122:123], v[{V+2}:{V+3}], v[{V+2}:{V+3}], v[122:123]
v_pk_add_f32 v[120:121], v[120:121], v[124:125]
v_pk_fma_f32 v[122:123], v[{V+4}:{V+5}], v[{V+4}:{V+5}], v[122:123]
v_add_f32 v120, v120, v121
v_pk_fma_f32 v[122:123], v[{V+6}:{V+7}], v[{V+6}:{V+7}], v[122:123]
v_add_f32 v122, v122, v123""")
    k("s_waitcnt lgkmcnt(0)\nglobal_store_dwordx4 v52, v[16:19], s[6:7] sc1")
    reduce64_pair(k, 120, 122)
    k("""v_mul_f32 v120, 0x3b000000, v120
v_mul_f32 v122, 0x3b000000, v122
v_fma_f32 v122, -v120, v120, v122
v_add_f32 v122, 0x3727c5ac, v122
v_rsq_f32 v122, v122
v_readlane_b32 s30, v120, 63
v_readlane_b32 s32, v122, 63""")
    for o in range(0, 8, 2):
        k(f"v_pk_add_f32 v[{V+o}:{V+o+1}], v[{V+o}:{V+o+1}], s[30:31] op_sel_hi:[1,0] neg_lo:[0,1] neg_hi:[0,1]")
    for o in range(0, 8, 2):
        k(f"v_pk_mul_f32 v[{V+o}:{V+o+1}], v[{V+o}:{V+o+1}], s[32:33] op_sel_hi:[1,0]")
    for o in range(0, 8, 2):
        k(f"v_pk_fma_f32 v[{V+o}:{V+o+1}], v[{V+o}:{V+o+1}], v[{CB+o}:{CB+o+1}], v[{SB+o}:{SB+o+1}]")
    for i in range(4):
        k(f"v_cvt_pk_bf16_f32 v{16+i}, v{V+2*i}, v{V+2*i+1}")
    k("ds_write_b128 v54, v[16:19]")
    k("s_waitcnt lgkmcnt(0)\ns_barrier\nds_read_b128 v[16:19], v55\ns_waitcnt lgkmcnt(0)")
    k("global_store_dwordx4 v53, v[16:19], s[6:7] sc1")
```

```python
from common import *
W = 128; B = 96; ACC = 32
def wd_srd(k):
    k(f"""s_mul_i32 s25, s39, 112
s_mul_i32 s26, s10, 14
s_add_u32 s25, s25, s26
s_lshl_b32 s25, s25, 11
s_add_u32 s25, s25, {WS_WD}
s_add_u32 s12, s6, s25
s_addc_u32 s13, s7, 0
s_mov_b32 s14, {28*1024}
s_mov_b32 s15, 0x20000""")
def wd_load(k, idx, vlane16):
    off = idx*1024
    k(f"s_mov_b32 s28, {off & ~4095}\nbuffer_load_dwordx4 v[{W+4*idx}:{W+4*idx+3}], v{vlane16}, s[12:15], s28 offen offset:{off & 4095} sc1")
def hh_addr(k, dst, vlane16, wave_s):
    k(f"""s_lshl_b32 s25, s36, 2
s_mul_i32 s25, s25, 112
s_lshl_b32 s26, s37, 3
s_add_u32 s25, s25, s26
s_add_u32 s25, s25, s{wave_s}
s_lshl_b32 s25, s25, 10
s_add_u32 s25, s25, {WS_HH}
v_add_u32 v{dst}, s25, v{vlane16}""")
def p4(k):
    k(f"""v_lshlrev_b32 v3, 4, v1
s_lshl_b32 s26, s36, 17
s_add_u32 s26, s26, {WS_H2}
s_add_u32 s16, s6, s26
s_addc_u32 s17, s7, 0
s_mov_b32 s18, 131072
s_mov_b32 s19, 0x20000
s_lshr_b32 s20, s10, 1
s_lshl_b32 s20, s20, 15
s_and_b32 s21, s10, 1
s_lshl_b32 s21, s21, 12
s_add_u32 s20, s20, s21""")
    wd_srd(k)
    k(f"v_add_u32 v6, s20, v3\nv_add_u32 v6, {L_BIG}, v6")
    k(f"v_add_u32 v4, {L_BIG}, v3\nv_add_u32 v5, {L_BIG+65536}, v3")
    def dma(c):
        for i in range(4):
            k(f"""s_add_u32 s27, s20, {(8*c+i)*1024}
s_add_u32 m0, s27, {L_BIG}
buffer_load_dwordx4 v3, s[16:19], s27 offen sc1 lds""")
    def check(c):
        for i in range(4):
            k(f"ds_read_b128 v[{8+4*i}:{8+4*i+3}], v6 offset:{(8*c+i)*1024}")
        k("s_waitcnt lgkmcnt(0)")
        k("""v_max3_u32 v8, v8, v9, v10
v_max3_u32 v11, v11, v12, v13
v_max3_u32 v14, v14, v15, v16
v_max3_u32 v17, v17, v18, v19
v_max3_u32 v20, v20, v21, v22
v_max3_u32 v8, v8, v11, v14
v_max3_u32 v17, v17, v20, v23
v_max_u32 v8, v8, v17
v_cmp_eq_u32 vcc, -1, v8""")
    lab = spin_begin(k, "h2p")
    dma(0)
    k("s_waitcnt vmcnt(0)")
    check(0)
    spin_end(k, lab)
    order = []
    for c in (1, 2, 3):
        dma(c); order += [("d", c)]*4
    k("s_barrier")
    k.stamp(16)
    seq = [(t, R) for t in range(32) for R in range(4)]
    DEPTH = 6
    def rd(idx):
        t, R = seq[idx]
        slot = idx % 8
        k(f"ds_read_b128 v[{B+4*slot}:{B+4*slot+3}], v{4 + (1 if R >= 2 else 0)} offset:{((R&1)*32+t)*1024}")
    for idx in range(DEPTH): rd(idx)
    for idx, (t, R) in enumerate(seq):
        nxt = idx + DEPTH
        if nxt < len(seq):
            tn = seq[nxt][0]
            if tn % 8 == 0 and seq[nxt][1] == 0:
                c = tn // 8
                last = max(i for i, o in enumerate(order) if o == ("d", c))
                k(f"s_waitcnt vmcnt({len(order)-1-last})")
                check(c)
                ok = k.label("ok")
                k(f"s_cbranch_vccz {ok}")
                lab = spin_begin(k, "h2r")
                dma(c)
                k("s_waitcnt vmcnt(0)")
                check(c)
                spin_end(k, lab)
                k(f"{ok}:\ns_barrier")
                k.stamp(16+c)
            rd(nxt)
            k(f"s_waitcnt lgkmcnt({DEPTH})")
        else:
            k(f"s_waitcnt lgkmcnt({len(seq)-1-idx})")
        b = B + 4*(idx % 8)
        cc = "0" if t == 0 else f"v[{ACC+16*R}:{ACC+16*R+15}]"
        k(f"v_mfma_f32_32x32x16_bf16 v[{ACC+16*R}:{ACC+16*R+15}], v[{W+4*t}:{W+4*t+3}], v[{b}:{b+3}], {cc}")
        if R == 3 and 1 <= t <= 28:
            wd_load(k, t-1, 3); order.append(("w", t-1))
    k.stamp(20)
    hh_addr(k, 6, 3, 10)
    for R in range(4):
        a = ACC + 16*R
        for o in range(0, 8, 2):
            k(f"v_pk_mul_f32 v[{a+o}:{a+o+1}], v[{a+o}:{a+o+1}], v[{a+8+o}:{a+8+o+1}]")
        for i in range(4):
            k(f"v_cvt_pk_bf16_f32 v{a+8+i}, v{a+2*i}, v{a+2*i+1}")
        k(f"v_add_u32 v7, {R*112*1024}, v6\nglobal_store_dwordx4 v7, v[{a+8}:{a+11}], s[6:7] sc1")
```

```python
from common import *
from ph4 import wd_srd, wd_load
WD = 128; ACC = 0; HB = 64; NR = 16
LANE16 = 240
def p5_pre(k):
    k(f"""v_lshlrev_b32 v{LANE16}, 4, v1
v_mov_b32 v241, v0
s_mul_i32 s26, s10, 14
s_mul_i32 s27, s38, 224
s_add_u32 s27, s27, s26
s_lshl_b32 s27, s27, 10
s_add_u32 s27, s27, {WS_HH}
s_add_u32 s16, s6, s27
s_addc_u32 s17, s7, 0
s_mov_b32 s18, {(112+14)*1024}
s_mov_b32 s19, 0x20000""")
    k(f"""v_and_b32 v252, 15, v0
v_lshrrev_b32 v253, 4, v0
s_lshl_b32 s25, s38, 16
s_lshl_b32 s26, s39, 7
s_add_u32 s25, s25, s26
s_add_u32 s25, s25, {WS_X2}
v_lshlrev_b32 v242, 10, v253
v_lshlrev_b32 v254, 3, v252
v_add_u32 v242, v242, v254
v_add_u32 v242, s25, v242
v_add_u32 v243, 32768, v242
s_lshl_b32 s26, s39, 8
s_add_u32 s26, s26, {WS_MOD + 5*2048}
v_lshlrev_b32 v254, 4, v252
v_add_u32 v254, s26, v254
global_load_dwordx4 v[248:251], v254, s[6:7] sc1""")
def p5_x2load(k):
    k("global_load_dwordx2 v[244:245], v242, s[6:7] sc1\nglobal_load_dwordx2 v[246:247], v243, s[6:7] sc1")
def p5_main(k, early):
    seq = [(f, si) for f in range(14) for si in range(2)]
    def ldh(idx):
        f, si = seq[idx]
        off = si*112*1024 + f*1024
        k(f"s_mov_b32 s28, {off & ~4095}\nbuffer_load_dwordx4 v[{HB+4*(idx%NR)}:{HB+4*(idx%NR)+3}], v{LANE16}, s[16:19], s28 offen offset:{off & 4095} sc1")
    def check(idx):
        hb = HB + 4*(idx % NR)
        k(f"""v_max3_u32 v252, v{hb}, v{hb+1}, v{hb+2}
v_max3_u32 v253, v{hb+3}, v{hb+4}, v{hb+5}
v_max3_u32 v252, v252, v{hb+6}, v{hb+7}
v_max_u32 v252, v252, v253
v_cmp_eq_u32 vcc, -1, v252""")
    if early:
        lab = spin_begin(k, "hhe")
        ldh(0); ldh(1)
        k("s_waitcnt vmcnt(0)")
        check(0)
        spin_end(k, lab, sleep=8)
    p5_x2load(k)
    order = []
    for i in range(NR):
        ldh(i); order.append(i)
    k.stamp(21)
    for f in range(14):
        idx = 2*f
        k(f"s_waitcnt vmcnt({len(order)-1-order.index(idx+1)})")
        check(idx)
        ok = k.label("ok")
        k(f"s_cbranch_vccz {ok}")
        lab = spin_begin(k, "hhr")
        ldh(idx); ldh(idx+1)
        k("s_waitcnt vmcnt(0)")
        check(idx)
        spin_end(k, lab)
        k(f"{ok}:")
        if f == 0: k.stamp(22)
        for si in range(2):
            hb = HB + 4*((idx+si) % NR)
            for ct in range(2):
                a = ACC + 16*(si*2+ct)
                cc = "0" if f == 0 else f"v[{a}:{a+15}]"
                k(f"v_mfma_f32_32x32x16_bf16 v[{a}:{a+15}], v[{hb}:{hb+3}], v[{WD+8*f+4*ct}:{WD+8*f+4*ct+3}], {cc}")
        for si in range(2):
            if idx + si + NR < len(seq):
                ldh(idx + si + NR); order.append(idx+si+NR)
    k.stamp(23)
    k("s_mul_i32 s25, s10, 16640\ns_mov_b32 m0, s25\ns_nop 7")
    for idx in range(4):
        for i in range(4):
            for r in range(4):
                off = ((idx*4+i)*2 + (r >> 1))*256 + (r & 1)*(8192+128)
                k(f"ds_write_addtid_b32 v{ACC+16*idx+4*i+r} offset:{off}")
    k("""v_and_b32 v72, 15, v241
v_lshrrev_b32 v73, 4, v241
v_lshrrev_b32 v74, 3, v72
v_lshlrev_b32 v74, 11, v74
v_and_b32 v75, 7, v72
v_lshlrev_b32 v75, 4, v75
v_add_u32 v74, v74, v75
v_lshrrev_b32 v75, 3, v73
v_lshlrev_b32 v75, 9, v75
v_add_u32 v74, v74, v75
v_bfe_u32 v75, v73, 2, 1
v_lshlrev_b32 v75, 7, v75
v_add_u32 v74, v74, v75
v_bfe_u32 v75, v73, 1, 1
v_lshlrev_b32 v75, 8, v75
v_add_u32 v74, v74, v75
v_and_b32 v75, 1, v73
v_mul_u32_u24 v75, 8320, v75
v_add_u32 v74, v74, v75
v_add_u32 v75, 65536, v74""")
    k(f"""s_lshl_b32 s25, s38, 10
s_lshl_b32 s26, s39, 7
s_add_u32 s25, s25, s26
v_lshlrev_b32 v76, 15, v73
v_lshlrev_b32 v77, 3, v72
v_add_u32 v76, v76, v77
v_add_u32 v76, s25, v76
v_add_u32 v77, {32*32*1024}, v76""")
    k("s_waitcnt vmcnt(0)")
    def chkx():
        k("""v_max3_u32 v252, v244, v245, v246
v_max_u32 v252, v252, v247
v_cmp_eq_u32 vcc, -1, v252""")
    chkx()
    ok = k.label("ok")
    k(f"s_cbranch_vccz {ok}")
    lab = spin_begin(k, "x2r")
    p5_x2load(k)
    k("s_waitcnt vmcnt(0)")
    chkx()
    spin_end(k, lab)
    k(f"{ok}:")
    k("s_waitcnt lgkmcnt(0)\ns_barrier")
    P = 80
    for si in range(2):
        for kq in range(8):
            base = kq*16640 + si*4096
            if base < 65536:
                k(f"ds_read_b128 v[{P+32*si+4*kq}:{P+32*si+4*kq+3}], v74 offset:{base}")
            else:
                k(f"ds_read_b128 v[{P+32*si+4*kq}:{P+32*si+4*kq+3}], v75 offset:{base-65536}")
    for si in range(2):
        k(f"s_waitcnt lgkmcnt({8 if si == 0 else 0})")
        b = P + 32*si
        for st in (1, 2, 4):
            for kq in range(0, 8, 2*st):
                for o in (0, 2):
                    k(f"v_pk_add_f32 v[{b+4*kq+o}:{b+4*kq+o+1}], v[{b+4*kq+o}:{b+4*kq+o+1}], v[{b+4*(kq+st)+o}:{b+4*(kq+st)+o+1}]")
        x = 244 + 2*si
        k(f"""v_lshlrev_b32 v64, 16, v{x}
v_and_b32 v65, 0xffff0000, v{x}
v_lshlrev_b32 v66, 16, v{x+1}
v_and_b32 v67, 0xffff0000, v{x+1}
v_pk_fma_f32 v[64:65], v[{b}:{b+1}], v[248:249], v[64:65]
v_pk_fma_f32 v[66:67], v[{b+2}:{b+3}], v[250:251], v[66:67]
v_cvt_pk_bf16_f32 v{68+2*si}, v64, v65
v_cvt_pk_bf16_f32 v{69+2*si}, v66, v67""")
        k(f"global_store_dwordx2 v{76+si}, v[{68+2*si}:{69+2*si}], s[8:9]")
```

```python
import sys
from common import *
import ph0, ph1, ph2, ph3, ph4, ph5
from ph0 import *
KN = NAME + "_kernel"
def finish(k, trace):
    if trace:
        k.stamp(23) if False else None
        k("s_waitcnt vmcnt(0) lgkmcnt(0)")
        k("s_memrealtime s[98:99]\ns_waitcnt lgkmcnt(0)\ns_mov_b32 s94, s98")
        k("v_mbcnt_lo_u32_b32 v1, -1, 0\nv_mbcnt_hi_u32_b32 v1, -1, v1\nv_mov_b32 v2, 0")
        for i in range(25):
            k(f"v_writelane_b32 v2, s{70+i}, {i}")
        k(f"v_writelane_b32 v2, s96, 25")
        k(f"""s_lshl_b32 s16, s2, 3
s_add_u32 s16, s16, s10
s_lshl_b32 s16, s16, 7
s_add_u32 s16, s16, {WS_TRACE}
v_lshlrev_b32 v3, 2, v1
v_add_u32 v3, s16, v3
s_mov_b32 exec_lo, -1
s_mov_b32 exec_hi, 0
global_store_dword v3, v2, s[6:7]""")
def gen(k, stop=None, trace=False, opt={}):
    END = f"L_end"
    FIN = f"L_fin"
    k(f"s_cmp_ge_u32 s2, 256\ns_cbranch_scc1 {END}")
    if trace:
        for i in range(25): k(f"s_mov_b32 s{70+i}, 0")
    k.stamp(0)
    prologue(k)
    clear_regs(k)
    ROLEW = k.label("rolew"); JOIN0 = k.label("join0")
    k(f"s_cmp_ge_u32 s2, 32\ns_cbranch_scc1 {ROLEW}")
    mod_issue(k)
    load_x_filter_table(k)
    clear_small(k)
    load_table(k)
    mod_issue2(k)
    clear_A(k)
    clear_xh(k)
    k("s_waitcnt lgkmcnt(0)\ns_add_u32 s3, s3, 1")
    k("s_waitcnt vmcnt(24)")
    k.stamp(1)
    mod_silu(k)
    k("s_mov_b32 s40, s2")
    mod_block(k, MW, 40, True, 0)
    k.stamp(2)
    k("s_waitcnt vmcnt(12)")
    ln_stats(k)
    prep_lds_write(k, False)
    k("s_waitcnt lgkmcnt(0)\ns_barrier")
    prep_out(k, False)
    k("s_waitcnt vmcnt(5)")
    k("s_lshl_b32 s40, s2, 1\ns_add_u32 s40, s40, 32")
    mod_block(k, MW+16, 40, False, 1)
    k("s_add_u32 s40, s40, 1")
    mod_block(k, MW+32, 40, False, 2)
    ph2.p2_fconst(k)
    k(f"s_branch {JOIN0}")
    k(f"{ROLEW}:")
    load_x_filter_table(k)
    wd_tile_load(k)
    load_table(k)
    clear_small(k)
    clear_A(k)
    k("s_waitcnt lgkmcnt(0)\ns_add_u32 s3, s3, 1")
    k("s_waitcnt vmcnt(11)")
    k.stamp(1)
    ln_stats(k)
    prep_lds_write(k, True)
    k("s_waitcnt lgkmcnt(0)\ns_barrier")
    prep_out(k, True)
    k.stamp(2)
    lab = k.label("nodma")
    k(f"s_cmp_lt_u32 s10, 4\ns_cbranch_scc1 {lab}")
    k("s_sub_u32 s41, s10, 4")
    wdma_addr(k, 120)
    n = wdma(k, 120, 0, 0, 256, 41, 4)
    assert n == 32
    k(f"{lab}:")
    ph2.p2_fconst(k)
    k(f"{JOIN0}:")
    k.stamp(3)
    lab = k.label("nopoll"); lab2 = k.label("polled")
    k(f"s_cmp_ge_u32 s10, 4\ns_cbranch_scc1 {lab}")
    ph1.mod_poll(k)
    k(f"s_branch {lab2}\n{lab}:")
    l3 = k.label("wm")
    k(f"s_cmp_ge_u32 s2, 32\ns_cbranch_scc1 {l3}\ns_waitcnt vmcnt(0)\ns_branch {lab2}\n{l3}:\ns_waitcnt vmcnt(32)\n{lab2}:")
    k("s_waitcnt lgkmcnt(0)\ns_barrier")
    k.stamp(4)
    ph1.flag_store(k, WS_FLA)
    ph1.p1_compute(k)
    k.stamp(5)
    if stop == "p1":
        k(f"s_branch {FIN}")
    lab = k.label("notr")
    k(f"s_cmp_lt_u32 s2, 32\ns_cbranch_scc1 {lab}")
    wtr_addr(k, 120, 121, 122)
    wtr_read(k, 120, 128, 0, 8)
    k(f"{lab}:")
    k("""s_cmp_eq_u32 s2, 0
s_cselect_b32 s16, 4, 8
s_cmp_ge_u32 s10, s16
s_cselect_b32 s34, 256, s34""")
    ph2.p2_pre(k)
    ph1.flag_check(k, WS_FLA, 16, "fla")
    k("s_waitcnt vmcnt(0) lgkmcnt(0)\ns_barrier")
    k.stamp(6)
    ACT = k.label("p2act"); P2E = k.label("p2end")
    k(f"s_cmp_lt_u32 s10, 4\ns_cbranch_scc1 {ACT}\ns_cmp_eq_u32 s2, 0\ns_cbranch_scc1 {ACT}")
    k("s_barrier")
    lab = k.label("nob")
    k(f"s_cmp_lt_u32 s2, 32\ns_cbranch_scc1 {lab}")
    k("s_sub_u32 s41, s10, 4")
    wdma_addr(k, 8)
    wdma(k, 8, 256, 0, 256, 41, 4)
    k("v_mov_b32 v16, -1\nv_mov_b32 v17, -1\nv_mov_b32 v18, -1\nv_mov_b32 v19, -1")
    k("v_subrev_u32 v12, 256, v0")
    x2_addr(k, 13, 12)
    k("global_store_dwordx4 v13, v[16:19], s[6:7] sc1\nv_add_u32 v14, 4096, v13\nglobal_store_dwordx4 v14, v[16:19], s[6:7] sc1")
    h2_addr(k, 13, 14, 12)
    k("global_store_dwordx4 v13, v[16:19], s[6:7] sc1\nv_add_u32 v14, 16384, v13\nglobal_store_dwordx4 v14, v[16:19], s[6:7] sc1")
    k("v_lshlrev_b32 v12, 4, v1\ns_lshl_b32 s42, s41, 1")
    ph4.hh_addr(k, 13, 12, 42)
    for R in range(4):
        for j in range(2):
            k(f"v_add_u32 v14, {R*112*1024 + j*1024}, v13\nglobal_store_dwordx4 v14, v[16:19], s[6:7] sc1")
    k(f"{lab}:")
    k("s_barrier\ns_barrier")
    k(f"s_branch {P2E}")
    k(f"{ACT}:")
    ph2.p2_main(k)
    k(f"{P2E}:")
    k.stamp(9)
    if stop == "p2":
        k(f"s_branch {FIN}")
    ph3.p3_pre(k)
    k.stamp(10)
    k("s_waitcnt vmcnt(0) lgkmcnt(0)\ns_barrier")
    k.stamp(11)
    ph1.flag_store(k, WS_FLB)
    ph3.p3_main(k)
    k.stamp(13)
    if stop == "p3":
        k(f"s_branch {FIN}")
    RM5 = k.label("rm5"); P5 = k.label("p5")
    k(f"s_cmp_lt_u32 s2, 32\ns_cbranch_scc1 {RM5}")
    wtr_addr(k, 120, 121, 122)
    wtr_read(k, 120, 192, 0, 8)
    ph1.flag_check(k, WS_FLB, 16, "flb")
    k("s_waitcnt vmcnt(0) lgkmcnt(0)\ns_barrier")
    k.stamp(14)
    ph4.p4(k)
    if stop == "p4":
        k(f"s_branch {FIN}")
    ph5.p5_pre(k)
    k("s_waitcnt vmcnt(0)\ns_barrier")
    k.stamp(15)
    ph5.p5_main(k, False)
    k(f"s_branch {FIN}")
    k(f"{RM5}:")
    if stop == "p4":
        k(f"s_branch {FIN}")
    ph4.wd_srd(k)
    k("v_lshlrev_b32 v3, 4, v1")
    for i in range(28): ph4.wd_load(k, i, 3)
    ph1.flag_check(k, WS_FLB, 16, "flb")
    ph5.p5_pre(k)
    k("s_waitcnt vmcnt(0)\ns_barrier")
    k.stamp(15)
    ph5.p5_main(k, True)
    k(f"{FIN}:")
    lab = k.label("tw")
    if stop != "p1": k(f"""s_cmp_lg_u32 s2, 0
s_cbranch_scc1 {lab}
s_cmp_lg_u32 s10, 0
s_cbranch_scc1 {lab}
v_mov_b32 v64, {WS_T}
v_mov_b32 v65, s3
s_mov_b64 exec, 1
global_store_dword v64, v65, s[6:7] sc1
s_mov_b64 exec, -1
{lab}:""")
    finish(k, trace)
    k(f"{END}:\ns_endpgm")
def build(path, stop=None, trace=False, debug=False, opt={}):
    k = K(KN, 256, block=512, lds=LDS_TOTAL, nv=256, ns=102)
    k.trace = trace; k.debug = debug
    gen(k, stop, trace, opt)
    body = k.text()
    ref = open('adaLN_cond__spectral_gfnet__glu_gated_bilinear__prompt.s.ref').read()
    h = ref.split("; Override launch")[0]
    tabs = ".text\n" + table_asm("tab_p1", ph1.p1_tables())
    txt = h + f"; @launch grid=(256,1,1) block=(512,1,1) lds={LDS_TOTAL}\n" + '.amdgcn_target "amdgcn-amd-amdhsa--gfx950"\n' + body + tabs
    open(path, "w").write(txt)
    print(path, "nops inserted", k.inserted, "lines", len(k.lines))
if __name__ == "__main__":
    for st in ("p1", "p2", "p3", "p4"):
        build(f"s_{st}.s", stop=st, debug=True)
    build("f1.s")
    build("f1t.s", trace=True)
```

```python
import sys
from common import *
import ph0, ph1, ph2, ph3, ph4, ph5
from ph0 import *
KN = NAME + "_kernel"
def finish(k, trace):
    if trace:
        k.stamp(23) if False else None
        k("s_waitcnt vmcnt(0) lgkmcnt(0)")
        k("s_memrealtime s[98:99]\ns_waitcnt lgkmcnt(0)\ns_mov_b32 s94, s98")
        k("v_mbcnt_lo_u32_b32 v1, -1, 0\nv_mbcnt_hi_u32_b32 v1, -1, v1\nv_mov_b32 v2, 0")
        for i in range(25):
            k(f"v_writelane_b32 v2, s{70+i}, {i}")
        k(f"v_writelane_b32 v2, s96, 25")
        k(f"""s_lshl_b32 s16, s2, 3
s_add_u32 s16, s16, s10
s_lshl_b32 s16, s16, 7
s_add_u32 s16, s16, {WS_TRACE}
v_lshlrev_b32 v3, 2, v1
v_add_u32 v3, s16, v3
s_mov_b32 exec_lo, -1
s_mov_b32 exec_hi, 0
global_store_dword v3, v2, s[6:7]""")
def finish_dbg(k, wg, sel):
    lab = k.label("dbgw")
    k("s_waitcnt vmcnt(0) lgkmcnt(0)")
    k("s_memrealtime s[98:99]\ns_waitcnt lgkmcnt(0)\ns_mov_b32 s94, s98")
    k(f"s_cmp_lg_u32 s2, {wg}\ns_cbranch_scc1 {lab}\ns_cmp_lg_u32 s10, 0\ns_cbranch_scc1 {lab}")
    k(f"s_load_dwordx2 s[20:21], s[0:1], {KARG['dbg']}")
    k("v_mbcnt_lo_u32_b32 v1, -1, 0\nv_mbcnt_hi_u32_b32 v1, -1, v1\nv_mov_b32 v2, 0")
    for j, i in enumerate(sel):
        k(f"s_sub_u32 s16, s{70+i}, s70\nv_writelane_b32 v2, s16, {j}")
    k(f"""v_lshlrev_b32 v3, 2, v1
s_waitcnt lgkmcnt(0)
s_mov_b32 exec_lo, 0xffff
s_mov_b32 exec_hi, 0
global_store_dword v3, v2, s[20:21]
{lab}:""")
def gen(k, stop=None, trace=False, opt={}):
    END = f"L_end"
    FIN = f"L_fin"
    k(f"s_cmp_ge_u32 s2, 256\ns_cbranch_scc1 {END}")
    if trace:
        for i in range(25): k(f"s_mov_b32 s{70+i}, 0")
    k.stamp(0)
    prologue(k)
    clear_regs(k)
    ROLEW = k.label("rolew"); JOIN0 = k.label("join0")
    k(f"s_cmp_ge_u32 s2, 32\ns_cbranch_scc1 {ROLEW}")
    mod_issue(k)
    load_x_filter_table(k)
    clear_small(k)
    load_table(k)
    mod_issue2(k)
    clear_A(k)
    clear_xh(k)
    k("s_waitcnt lgkmcnt(0)\ns_add_u32 s3, s3, 1")
    k("s_waitcnt vmcnt(24)")
    k.stamp(1)
    mod_silu(k)
    k("s_mov_b32 s40, s2")
    mod_block(k, MW, 40, True, 0)
    k.stamp(2)
    k("s_waitcnt vmcnt(12)")
    ln_stats(k)
    prep_lds_write(k, False)
    k("s_waitcnt lgkmcnt(0)\ns_barrier")
    prep_out(k, False)
    k("s_waitcnt vmcnt(5)")
    k("s_lshl_b32 s40, s2, 1\ns_add_u32 s40, s40, 32")
    mod_block(k, MW+16, 40, False, 1)
    k("s_add_u32 s40, s40, 1")
    mod_block(k, MW+32, 40, False, 2)
    ph2.p2_fconst(k)
    k(f"s_branch {JOIN0}")
    k(f"{ROLEW}:")
    load_x_filter_table(k)
    wd_tile_load(k)
    load_table(k)
    clear_small(k)
    clear_A(k)
    k("s_waitcnt lgkmcnt(0)\ns_add_u32 s3, s3, 1")
    k("s_waitcnt vmcnt(11)")
    k.stamp(1)
    ln_stats(k)
    prep_lds_write(k, True)
    k("s_waitcnt lgkmcnt(0)\ns_barrier")
    prep_out(k, True)
    k.stamp(2)
    lab = k.label("nodma")
    k(f"s_cmp_lt_u32 s10, 4\ns_cbranch_scc1 {lab}")
    k("s_sub_u32 s41, s10, 4")
    wdma_addr(k, 120)
    n = wdma(k, 120, 0, 0, 256, 41, 4)
    assert n == 32
    k(f"{lab}:")
    ph2.p2_fconst(k)
    k(f"{JOIN0}:")
    k.stamp(3)
    lab = k.label("nopoll"); lab2 = k.label("polled")
    k(f"s_cmp_ge_u32 s10, 4\ns_cbranch_scc1 {lab}")
    ph1.mod_poll(k)
    k(f"s_branch {lab2}\n{lab}:")
    l3 = k.label("wm")
    k(f"s_cmp_ge_u32 s2, 32\ns_cbranch_scc1 {l3}\ns_waitcnt vmcnt(0)\ns_branch {lab2}\n{l3}:\ns_waitcnt vmcnt(32)\n{lab2}:")
    k("s_waitcnt lgkmcnt(0)\ns_barrier")
    k.stamp(4)
    ph1.flag_store(k, WS_FLA)
    ph1.p1_compute(k)
    k.stamp(5)
    if stop == "p1":
        k(f"s_branch {FIN}")
    lab = k.label("notr")
    k(f"s_cmp_lt_u32 s2, 32\ns_cbranch_scc1 {lab}")
    wtr_addr(k, 120, 121, 122)
    wtr_read(k, 120, 128, 0, 8)
    k(f"{lab}:")
    k("""s_cmp_eq_u32 s2, 0
s_cselect_b32 s16, 4, 8
s_cmp_ge_u32 s10, s16
s_cselect_b32 s34, 256, s34""")
    ph2.p2_pre(k)
    ph1.flag_check(k, WS_FLA, 16, "fla")
    k("s_waitcnt vmcnt(0) lgkmcnt(0)\ns_barrier")
    k.stamp(6)
    ACT = k.label("p2act"); P2E = k.label("p2end")
    k(f"s_cmp_lt_u32 s10, 4\ns_cbranch_scc1 {ACT}\ns_cmp_eq_u32 s2, 0\ns_cbranch_scc1 {ACT}")
    k("s_barrier")
    lab = k.label("nob")
    k(f"s_cmp_lt_u32 s2, 32\ns_cbranch_scc1 {lab}")
    k("s_sub_u32 s41, s10, 4")
    wdma_addr(k, 8)
    wdma(k, 8, 256, 0, 256, 41, 4)
    k("v_mov_b32 v16, -1\nv_mov_b32 v17, -1\nv_mov_b32 v18, -1\nv_mov_b32 v19, -1")
    k("v_subrev_u32 v12, 256, v0")
    x2_addr(k, 13, 12)
    k("global_store_dwordx4 v13, v[16:19], s[6:7] sc1\nv_add_u32 v14, 4096, v13\nglobal_store_dwordx4 v14, v[16:19], s[6:7] sc1")
    h2_addr(k, 13, 14, 12)
    k("global_store_dwordx4 v13, v[16:19], s[6:7] sc1\nv_add_u32 v14, 16384, v13\nglobal_store_dwordx4 v14, v[16:19], s[6:7] sc1")
    k("v_lshlrev_b32 v12, 4, v1\ns_lshl_b32 s42, s41, 1")
    ph4.hh_addr(k, 13, 12, 42)
    for R in range(4):
        for j in range(2):
            k(f"v_add_u32 v14, {R*112*1024 + j*1024}, v13\nglobal_store_dwordx4 v14, v[16:19], s[6:7] sc1")
    k(f"{lab}:")
    k("s_barrier\ns_barrier")
    k(f"s_branch {P2E}")
    k(f"{ACT}:")
    ph2.p2_main(k)
    k(f"{P2E}:")
    k.stamp(9)
    if stop == "p2":
        k(f"s_branch {FIN}")
    ph3.p3_pre(k)
    k.stamp(10)
    k("s_waitcnt vmcnt(0) lgkmcnt(0)\ns_barrier")
    k.stamp(11)
    ph1.flag_store(k, WS_FLB)
    ph3.p3_main(k)
    k.stamp(13)
    if stop == "p3":
        k(f"s_branch {FIN}")
    RM5 = k.label("rm5"); P5 = k.label("p5")
    k(f"s_cmp_lt_u32 s2, 32\ns_cbranch_scc1 {RM5}")
    wtr_addr(k, 120, 121, 122)
    wtr_read(k, 120, 192, 0, 8)
    ph1.flag_check(k, WS_FLB, 16, "flb")
    k("s_waitcnt vmcnt(0) lgkmcnt(0)\ns_barrier")
    k.stamp(14)
    ph4.p4(k)
    if stop == "p4":
        k(f"s_branch {FIN}")
    ph5.p5_pre(k)
    k("s_waitcnt vmcnt(0)\ns_barrier")
    k.stamp(15)
    ph5.p5_main(k, False)
    k(f"s_branch {FIN}")
    k(f"{RM5}:")
    if stop == "p4":
        k(f"s_branch {FIN}")
    ph4.wd_srd(k)
    k("v_lshlrev_b32 v3, 4, v1")
    for i in range(28): ph4.wd_load(k, i, 3)
    ph1.flag_check(k, WS_FLB, 16, "flb")
    ph5.p5_pre(k)
    k("s_waitcnt vmcnt(0)\ns_barrier")
    k.stamp(15)
    ph5.p5_main(k, True)
    k(f"{FIN}:")
    lab = k.label("tw")
    if stop != "p1": k(f"""s_cmp_lg_u32 s2, 0
s_cbranch_scc1 {lab}
s_cmp_lg_u32 s10, 0
s_cbranch_scc1 {lab}
v_mov_b32 v64, {WS_T}
v_mov_b32 v65, s3
s_mov_b64 exec, 1
global_store_dword v64, v65, s[6:7] sc1
s_mov_b64 exec, -1
{lab}:""")
    if opt.get('dbg') is not None: finish_dbg(k, opt['dbg'], opt['sel'])
    else: finish(k, trace)
    k(f"{END}:\ns_endpgm")
def build(path, stop=None, trace=False, debug=False, opt={}):
    k = K(KN, 256, block=512, lds=LDS_TOTAL, nv=256, ns=102)
    k.trace = trace; k.debug = debug
    gen(k, stop, trace, opt)
    body = k.text()
    ref = open('adaLN_cond__spectral_gfnet__glu_gated_bilinear__prompt.s.ref').read()
    h = ref.split("; Override launch")[0]
    tabs = ".text\n" + table_asm("tab_p1", ph1.p1_tables())
    txt = h + f"; @launch grid=(256,1,1) block=(512,1,1) lds={LDS_TOTAL}\n" + '.amdgcn_target "amdgcn-amd-amdhsa--gfx950"\n' + body + tabs
    open(path, "w").write(txt)
    print(path, "nops inserted", k.inserted, "lines", len(k.lines))
if __name__ == "__main__":
    for st in ("p1", "p2", "p3", "p4"):
        build(f"s_{st}.s", stop=st, debug=True)
    build("f1.s")
    build("f1t.s", trace=True)
    build("f1d.s", trace=True, opt=dict(dbg=40, sel=[1,3,4,5,6,8,9,11,12,13,14,16,20,15,22,24]))
    build("f1e.s", trace=True, opt=dict(dbg=5, sel=[1,2,3,4,5,6,8,9,11,12,13,15,21,22,23,24]))
```
